```python
import torch

def _softmax(x, axis=-1):
    return torch.softmax(x, dim=axis)

def _gelu(x):
    return torch.nn.functional.gelu(x, approximate='tanh')

def _silu(x):
    return torch.nn.functional.silu(x)

def _sigmoid(x):
    return torch.sigmoid(x)

def _layernorm(x, axis=-1, eps=1e-05):
    m = x.mean(dim=axis, keepdim=True)
    v = x.var(dim=axis, keepdim=True, unbiased=False)
    return (x - m) / torch.sqrt(v + eps)

def _scatter_add(tgt, idx, src, axis=0):
    return tgt.clone().index_add_(axis, idx, src)

def _segment_sum(src, seg, n):
    out = torch.zeros((n,) + src.shape[1:], dtype=src.dtype)
    return out.index_add_(0, seg, src)

def _pad(x, pw):
    flat = tuple((v for pair in reversed(pw) for v in pair))
    return torch.nn.functional.pad(x, flat)
kernel_name = 'standalone__video_video_swin__vision'

def setup_inputs():

    _w = lambda a: (lambda t: t.to(torch.bfloat16) if t.is_floating_point() else t)(torch.as_tensor(a))
    T = 4
    H = W = 384 // 8 * 8
    C, win = (96, 8)
    return {'x': _w((lambda *s: torch.randn(*s, dtype=torch.bfloat16) * 0.1)(1, T, H, W, C)), 'wqkv_t': _w((lambda *s: torch.randn(*s, dtype=torch.bfloat16) * 0.1)(C, 3 * C)), 'wo_t': _w((lambda *s: torch.randn(*s, dtype=torch.bfloat16) * 0.1)(C, C)), 'wqkv_s': _w((lambda *s: torch.randn(*s, dtype=torch.bfloat16) * 0.1)(C, 3 * C)), 'wo_s': _w((lambda *s: torch.randn(*s, dtype=torch.bfloat16) * 0.05)(C, C))}

def reference(x, wqkv_t, wo_t, wqkv_s, wo_s):
    B, T, H, W, C = x.shape
    win = 8
    scale = C ** (-0.5)
    h = _layernorm(x, axis=-1)
    ht = (lambda x, *d: x.permute(*d))(h, 0, 2, 3, 1, 4).reshape(B * H * W, T, C)
    qkv = ht @ wqkv_t
    q, k, v = (qkv[..., :C].clone(), qkv[..., C:2 * C].clone(), qkv[..., 2 * C:].clone())
    p = _softmax(torch.einsum('btc,bsc->bts', q, k) * scale, axis=-1)
    ot = torch.einsum('bts,bsc->btc', p, v) @ wo_t
    ot = (lambda x, *d: x.permute(*d))(ot.reshape(B, H, W, T, C), 0, 3, 1, 2, 4)
    x = x + ot
    h = _layernorm(x, axis=-1)
    nh, nw = (H // win, W // win)
    hs = h.reshape(B * T, nh, win, nw, win, C)
    hw = (lambda x, *d: x.permute(*d))(hs, 0, 1, 3, 2, 4, 5).reshape(B * T * nh * nw, win * win, C)
    qkv = hw @ wqkv_s
    q, k, v = (qkv[..., :C].clone(), qkv[..., C:2 * C].clone(), qkv[..., 2 * C:].clone())
    p = _softmax(torch.einsum('bqc,bkc->bqk', q, k) * scale, axis=-1)
    os = torch.einsum('bqk,bkc->bqc', p, v) @ wo_s
    os = (lambda x, *d: x.permute(*d))(os.reshape(B * T, nh, nw, win, win, C), 0, 1, 3, 2, 4, 5)
    os = os.reshape(B, T, H, W, C)
    return x + os
```

```python
import re

def V(b, n=1): return [f"v{b+i}" for i in range(n)]
def vr(b, n=1): return f"v{b}" if n == 1 else f"v[{b}:{b+n-1}]"
def sr(b, n=1): return f"s{b}" if n == 1 else f"s[{b}:{b+n-1}]"
def S(b, n=1): return [f"s{b+i}" for i in range(n)]

class I:
    __slots__ = ("text","kind","rd","wr","ab","c","dpp","minT","prio","idx","note","cnt","gap","after")
    def __init__(s, text, kind, rd=(), wr=(), ab=(), c=(), dpp=(), minT=0, note=""):
        s.text=text; s.kind=kind; s.rd=set(rd)|set(ab)|set(c)|set(dpp); s.wr=set(wr); s.ab=set(ab); s.c=set(c); s.dpp=set(dpp)
        s.minT=minT; s.prio=0; s.idx=0; s.note=note; s.cnt=0; s.gap=None; s.after=None
    def __repr__(s): return s.text

MF = {"m32":8, "m16":4, "m4":2}
VALUK = ("valu","trans","perm")
def is_mf(i): return i.kind in MF
def is_valu(i): return i.kind in VALUK

def opnd(x):
    if isinstance(x, int): return vr(x), V(x)
    if isinstance(x, tuple): return vr(x[0], x[1]), V(x[0], x[1])
    if isinstance(x, str):
        t = x.lstrip("-").strip("|")
        m = re.fullmatch(r"v(\d+)", t)
        if m: return x, [t]
        m = re.fullmatch(r"s(\d+)", t)
        if m: return x, [t]
        m = re.fullmatch(r"s\[(\d+):(\d+)\]", t)
        if m: return x, S(int(m.group(1)), int(m.group(2))-int(m.group(1))+1)
        if t in ("vcc","exec","m0"): return x, [t]
        return x, []
    raise ValueError(x)

def m32(d, a, b, c=None):
    ct = vr(c,16) if c is not None else "0"
    return I(f"v_mfma_f32_32x32x16_bf16 {vr(d,16)}, {vr(a,4)}, {vr(b,4)}, {ct}", "m32", wr=V(d,16), ab=V(a,4)+V(b,4), c=V(c,16) if c is not None else ())
def m16(d, a, b, c=None):
    ct = vr(c,4) if c is not None else "0"
    return I(f"v_mfma_f32_16x16x32_bf16 {vr(d,4)}, {vr(a,4)}, {vr(b,4)}, {ct}", "m16", wr=V(d,4), ab=V(a,4)+V(b,4), c=V(c,4) if c is not None else ())
def m4(d, a, b, c=None):
    ct = vr(c,4) if c is not None else "0"
    return I(f"v_mfma_f32_4x4x4_16b_bf16 {vr(d,4)}, {vr(a,2)}, {vr(b,2)}, {ct}", "m4", wr=V(d,4), ab=V(a,2)+V(b,2), c=V(c,4) if c is not None else ())
TRANS = ("v_exp_f32","v_rcp_f32","v_rsq_f32","v_log_f32","v_sqrt_f32")
def va(op, d, *src, mod=""):
    ts=[]; rd=[]
    for x in src:
        t,r = opnd(x); ts.append(t); rd += r
    dt, dr = opnd(d)
    kind = "trans" if op in TRANS else "valu"
    if op in ("v_fmac_f32",): rd += dr
    return I(f"{op} {dt}, {', '.join(ts)}{(' '+mod) if mod else ''}", kind, rd=rd, wr=dr)
def dpp(op, d, s0, s1, ctrl):
    i = va(op+"_dpp", d, s0, *( [s1] if s1 is not None else []), mod=ctrl+" row_mask:0xf bank_mask:0xf")
    i.dpp = set(V(s0)); return i
def swap32(a, b):
    return I(f"v_permlane32_swap_b32 v{a}, v{b}", "perm", rd=V(a)+V(b), wr=V(a)+V(b), dpp=V(a)+V(b))
def cvt(d, a, b): return va("v_cvt_pk_bf16_f32", d, a, b)
def dsr(d, n, addr, off, mem=()):
    op = {1:"ds_read_b32",2:"ds_read_b64",4:"ds_read_b128"}[n]
    return I(f"{op} {vr(d,n)}, v{addr} offset:{off}", "dsr", rd=V(addr)+list(mem), wr=V(d,n))
def dsw(addr, s, n, off, mem=(), op=None):
    op = op or {1:"ds_write_b32",2:"ds_write_b64",4:"ds_write_b128"}[n]
    return I(f"{op} v{addr}, {vr(s,n)} offset:{off}", "dsw", rd=V(addr)+V(s,n), wr=list(mem))
def sa(text, rd=(), wr=()): return I(text, "salu", rd=rd, wr=wr)
def vml(d, n, voff, srd, soff, off, flags=""):
    op = {1:"buffer_load_dword",2:"buffer_load_dwordx2",4:"buffer_load_dwordx4"}[n]
    st, sr_ = opnd(soff)
    return I(f"{op} {vr(d,n)}, v{voff}, {sr(srd,4)}, {st} offen offset:{off} {flags}".rstrip(), "vml", rd=V(voff)+S(srd,4)+sr_, wr=V(d,n))
def vms(s, n, voff, srd, soff, off, flags=""):
    op = {1:"buffer_store_dword",2:"buffer_store_dwordx2",4:"buffer_store_dwordx4"}[n]
    st, sr_ = opnd(soff)
    i = I(f"{op} {vr(s,n)}, v{voff}, {sr(srd,4)}, {st} offen offset:{off} {flags}".rstrip(), "vms", rd=V(voff)+V(s,n)+S(srd,4)+sr_, wr=["M:vms"])
    i.c = set(V(s,n))
    return i
def dma(voff, srd, soff, off, flags="", mem=()):
    st, sr_ = opnd(soff)
    return I(f"buffer_load_dwordx4 v{voff}, {sr(srd,4)}, {st} offen offset:{off} {flags} lds", "dma", rd=V(voff)+S(srd,4)+sr_+["m0"]+list(mem), wr=["M:dma"])
def bar(rd=(), wr=(), minT=0): return I("s_barrier", "bar", rd=rd, wr=wr, minT=minT)
def raw(text, kind="salu", rd=(), wr=()): return I(text, kind, rd=rd, wr=wr)

def need_states(p, c):
    n = 0
    if is_mf(p):
        ps = MF[p.kind]
        if is_mf(c):
            if p.wr & c.ab: n = max(n, {2:5,4:8,8:12}[ps])
            if p.wr & c.c:
                if p.kind == c.kind and p.wr == c.c: n = max(n, 2 if ps == 2 else 0)
                else: n = max(n, {2:4,4:6,8:10}[ps])
            elif p.wr & c.wr: n = max(n, {2:4,4:6,8:10}[ps])
        else:
            if (p.wr & c.rd) or (p.wr & c.wr): n = max(n, {2:5,4:8,8:12}[ps])
            if p.c & c.wr: n = max(n, {2:1,4:3,8:7}[ps])
    elif is_valu(p):
        if is_mf(c) and (p.wr & c.rd): n = max(n, 2)
        if is_valu(c):
            if p.wr & c.dpp: n = max(n, 2)
            if p.kind == "trans" and c.kind != "trans" and (p.wr & c.rd): n = max(n, 1)
            if any(not r.startswith("v") or r == "vcc" for r in (p.wr & c.rd)): n = max(n, 2)
            if "readfirstlane" in c.text or "readlane" in c.text:
                if p.wr & c.rd: n = max(n, 1)
        if c.kind in ("vml","vms","dma") and any(r.startswith("s") for r in (p.wr & c.rd)): n = max(n, 5)
        if c.kind == "salu" and any(r.startswith("s") or r=="vcc" for r in (p.wr & c.rd)): n = max(n, 1)
    elif p.kind == "vms":
        if p.c & c.wr: n = max(n, 2)
    elif p.kind == "salu":
        if "m0" in p.wr and c.kind == "dma": n = max(n, 1)
    return n

def states_of(i):
    if i.kind == "nop": return i.cnt
    return 1

PHYS = True
def pad_needed(hist, ins, depth=24):
    h = hist[-depth:]
    pad = 0
    for a in range(len(h)):
        n = need_states(h[a], ins)
        if n <= 0: continue
        g = 0; lm = None; lg = 0
        if is_mf(h[a]): lm = h[a]
        prev = h[a]
        for q in h[a+1:]:
            g += states_of(prev)
            if PHYS and is_mf(q):
                if lm is not None: g = max(g, lg + MF[lm.kind])
                lm = q; lg = g
            prev = q
        g += states_of(prev)
        if PHYS and is_mf(ins) and lm is not None and lg + MF[lm.kind] >= n + 1: continue
        if n + 1 - g > pad: pad = n + 1 - g
    return pad

def finalize(seq, history=(), lgkm_in=0):
    out = []
    ds_q = []
    vm_q = []
    hist = list(history)
    for ins in seq:
        touch = ins.rd | ins.wr
        need = None
        for k, p in enumerate(ds_q):
            if p.kind == "dsr" and (p.wr & touch): need = len(ds_q) - 1 - k
        vneed = None
        for k, p in enumerate(vm_q):
            if p.kind == "vml" and (p.wr & touch): vneed = len(vm_q) - 1 - k
        if need is not None or vneed is not None:
            t = "s_waitcnt"
            if vneed is not None:
                vneed = min(vneed, 63); t += f" vmcnt({vneed})"; vm_q = vm_q[len(vm_q)-vneed:] if vneed else []
            if need is not None:
                need = min(need, 15); t += f" lgkmcnt({need})"; ds_q = ds_q[len(ds_q)-need:] if need else []
            w = I(t, "wait"); out.append(w); hist.append(w)
        if ins.note == "wait_dma":
            ks = [k for k, p in enumerate(vm_q) if p.kind == "dma"]
            if ks:
                vn = min(len(vm_q) - 1 - ks[-1], 63)
                w = I(f"s_waitcnt vmcnt({vn})", "wait"); out.append(w); hist.append(w)
                vm_q = vm_q[len(vm_q)-vn:] if vn else []
        if ins.kind == "wait":
            m = re.search(r"lgkmcnt\((\d+)\)", ins.text)
            if m:
                n = int(m.group(1)); ds_q = ds_q[len(ds_q)-n:] if n else []
            m = re.search(r"vmcnt\((\d+)\)", ins.text)
            if m:
                n = int(m.group(1)); vm_q = vm_q[len(vm_q)-n:] if n else []
        pad = pad_needed(hist, ins)
        while pad > 0:
            k = min(pad, 16)
            w = I(f"s_nop {k-1}", "nop"); w.cnt = k; out.append(w); hist.append(w); pad -= k
        out.append(ins); hist.append(ins)
        if ins.kind in ("dsr","dsw"): ds_q.append(ins)
        if ins.kind in ("vml","vms","dma"): vm_q.append(ins)
    return out

def schedule(prog, G32=32, dslat=140, verbose=False, window=400, fixed=False, vlat=4, history=()):
    n = len(prog)
    for k, i in enumerate(prog): i.idx = k
    preds = [[] for _ in range(n)]
    lastw = {}; readers = {}; lastmf = None
    order_mem = {"dsr":"ds","dsw":"ds"}
    for k, i in enumerate(prog):
        dep = {}
        for r in i.rd:
            if r in lastw: dep[lastw[r]] = True
        for r in i.wr:
            if r in lastw: dep.setdefault(lastw[r], False)
            for q in readers.get(r, ()):
                if q != k: dep.setdefault(q, False)
        if fixed and is_mf(i):
            if lastmf is not None: dep.setdefault(lastmf, False)
            lastmf = k
        if i.after is not None: dep.setdefault(i.after.idx, False)
        preds[k] = list(dep.items())
        for r in i.rd: readers.setdefault(r, []).append(k)
        for r in i.wr: lastw[r] = k; readers[r] = []
    issue = {"m32":8,"m16":8,"m4":4,"valu":4,"trans":8,"perm":8,"dsr":4,"dsw":8,"vml":4,"vms":8,"dma":8,"salu":4,"bar":4,"wait":4,"chk":20}
    pipe = {"m32":G32,"m16":G32//2,"m4":G32//4}
    pp = lambda p: p.gap if p.gap is not None else pipe[p.kind]
    def lat(p, c, israw):
        if p.kind == "dsr" and israw: return dslat
        if p.kind == "vml" and israw: return 1500
        if is_mf(p):
            if is_mf(c) and p.kind == c.kind and p.wr == c.c and not (p.wr & c.ab): return pp(p)
            if israw or (p.wr & c.wr): return (4*MF[p.kind] if fixed else pp(p)) + 20
            if is_mf(c): return pp(p)
        if is_valu(p) and is_valu(c) and israw: return max(issue[p.kind], vlat)
        return issue[p.kind]
    succs = [[] for _ in range(n)]
    for k in range(n):
        for (p, r) in preds[k]: succs[p].append((k, r))
    for k in range(n-1, -1, -1):
        i = prog[k]
        own = pp(i) if is_mf(i) else issue[i.kind]
        i.prio = own + max([lat(i, prog[c], r) - own + prog[c].prio for (c, r) in succs[k]] + [0])
    done = [None]*n
    pos = [None]*n
    npred = [len(p) for p in preds]
    ready = [k for k in range(n) if npred[k] == 0]
    out = []; t = 0; pfree = 0; nops = 0
    first_un = 0
    while ready:
        best = None
        while first_un < n and done[first_un] is not None: first_un += 1
        for k in ready:
            if k > first_un + window: continue
            i = prog[k]
            st = max(t, i.minT)
            for (p, r) in preds[k]:
                st = max(st, done[p] + lat(prog[p], i, r))
            if best is not None and st > best[0][0]: continue
            pad = pad_needed((list(history) + out)[-14:], i, 14)
            st = max(st, t + 4*pad)
            if is_mf(i): st = max(st, pfree)
            key = (st, 0 if is_mf(i) else 1, -i.prio, k)
            if best is None or key < best[0]: best = (key, k, pad)
        key, k, pad = best
        i = prog[k]; st = key[0]
        done[k] = st; out.append(i); ready.remove(k); nops += pad
        t = st + issue[i.kind]
        if is_mf(i): pfree = st + pp(i)
        for (c, r) in succs[k]:
            npred[c] -= 1
            if npred[c] == 0: ready.append(c)
    assert len(out) == n
    for k in range(n): prog[k].cnt = prog[k].cnt if prog[k].kind == "nop" else done[k]
    if verbose:
        from collections import Counter
        print("; sched est cycles", t, "n", n, "padstates", nops, dict(Counter(i.kind for i in out)))
    return out, t

def emit(seq): return "".join(f"    {i.text}\n" for i in seq)
```

```python
import sys, math
sys.path.insert(0, "work")
from asmlib import *

FS, RS, XB = 28311552, 73728, 113246208
NWG, NWIN = 256, 9
LW = 98304; LR = 159744; LF = 162048; LDSZ = 163840
FD, FX = LF-LW, LF-LW+4
F_MT2, F_VT, F_MS, F_VS = 0, 6, 24, 42
KNAME = "standalone__video_video_swin__vision_kernel"
SCALE = 96 ** -0.5 * math.log2(math.e)
import struct
def fbits(x): return "0x%08x" % struct.unpack("<I", struct.pack("<f", x))[0]

class Opt:
    dbg_x1 = False
    G32T = 48; G32S = 48; dslat = 160
    vshare = False
    sigD = 3600
    prioT = 0; prioS = 1
    prof = False
    dynT = None; dynS = None
    def __init__(s, **k):
        for a, b in k.items():
            assert hasattr(s, a), a
            setattr(s, a, b)

def stamp(o, rd=(), wr=()):
    if o.prof != 1: return []
    return [I("s_memtime s[44:45]\n    s_waitcnt lgkmcnt(0)\n    s_mov_b32 m0, s48\n    s_add_u32 s48, s48, 1\n    s_movreld_b32 s50, s44", "wait", rd=list(rd), wr=list(wr)+["m0","scc","M:st"])]
def prof_out(o):
    if not o.prof: return ""
    a = "    s_memrealtime s[44:45]\n    s_waitcnt lgkmcnt(0)\n    s_mov_b32 s99, s44\n    s_mov_b32 s14, 0x1000000\n    v_mov_b32 v1, 0\n"
    for k in range(50): a += f"    v_writelane_b32 v1, s{50+k}, {k}\n"
    a += "    v_mbcnt_lo_u32_b32 v2, -1, 0\n    v_mbcnt_hi_u32_b32 v2, -1, v2\n    v_lshlrev_b32 v2, 2, v2\n"
    a += "    s_lshl_b32 s19, s2, 3\n    s_add_u32 s19, s19, s49\n    s_lshl_b32 s19, s19, 8\n    s_add_u32 s19, s19, 0x100000\n"
    a += "    buffer_store_dword v1, v2, s[12:15], s19 offen\n"
    return a
def fine(o, seq, every):
    if o.prof != 2: return seq
    out = []; n = 0; k = 0
    def st():
        nonlocal k
        out.append(I(f"s_memtime s[{50+2*k}:{51+2*k}]", "salu")); k += 1
    st()
    for i in seq:
        out.append(i)
        if i.kind == "m32":
            n += 1
            if n % every == 0 and k < 11: st()
    while k < 12: st()
    out.append(I("s_waitcnt lgkmcnt(0)", "wait"))
    out.append(I("s_cmp_eq_u32 s17, 4", "salu"))
    for j in range(12): out.append(I(f"s_cselect_b32 s{74+j}, s{50+2*j}, s{74+j}", "salu"))
    out.append(I("s_cmp_eq_u32 s17, s97", "salu"))
    for j in range(11): out.append(I(f"s_cselect_b32 s{86+j}, s{52+2*j}, s{86+j}", "salu"))
    out.append(I(f"s_cselect_b32 s96, s50, s96", "salu"))
    return out
def dynprio(seq, cfg):
    if not cfg: return seq
    hi, lo, gap = cfg
    mf = [k for k, i in enumerate(seq) if is_mf(i)]
    up = set(); down = set()
    cost = lambda a, b: sum(1 for i in seq[a+1:b] if is_valu(i))
    for n, k in enumerate(mf):
        if n == 0 or cost(mf[n-1], k) > gap: up.add(k)
        if n == len(mf)-1 or cost(k, mf[n+1]) > gap: down.add(k)
    out = []
    for k, i in enumerate(seq):
        if k in up:
            j = len(out)
            while j > 0 and out[j-1].kind in ("nop", "wait"): j -= 1
            out.insert(j, I(f"s_setprio {hi}", "salu"))
        out.append(i)
        if k in down: out.append(I(f"s_setprio {lo}", "salu"))
    print("; dynprio toggles", len(up))
    return out
def srd(b, lo, size):
    return [sa(f"s_mov_b32 s{b}, s{lo}", rd=S(lo), wr=S(b)), sa(f"s_and_b32 s{b+1}, s{lo+1}, 0xffff", rd=S(lo+1), wr=S(b+1)),
            sa(f"s_mov_b32 s{b+2}, {size}", wr=S(b+2)), sa(f"s_mov_b32 s{b+3}, 0x20000", wr=S(b+3))]

def tree_sum(regs, dst, op="v_add_f32", tmp=None):
    out = []; cur = list(regs)
    while len(cur) > 1:
        nx = []
        for k in range(0, len(cur)-1, 2):
            d = dst if len(cur) == 2 else (tmp.pop(0) if tmp else cur[k])
            out.append(va(op, d, cur[k], cur[k+1])); nx.append(d)
        if len(cur) & 1: nx.append(cur[-1])
        cur = nx
    return out

P_WK, P_WQ, P_D, P_B2, P_IF, P_ONE, P_AT = 16, 88, 160, 208, 232, 240, 244
def prep_consts(vL, vA, vO):
    p = []
    t0, t1, t2, t3, t4 = 10, 11, 12, 13, 14
    p += [va("v_and_b32", t0, "0x13", vL), va("v_and_b32", t1, "4", vL), va("v_and_b32", t2, "8", vL),
          va("v_lshl_or_b32", t0, t1, "1", t0), va("v_lshrrev_b32", t2, "1", t2), va("v_or_b32", t0, t0, t2),
          va("v_lshrrev_b32", t3, "5", vL),
          va("v_lshlrev_b32", t4, "4", t3),
          va("v_mul_u32_u24", vA, "576", t0), va("v_add_u32", vA, vA, t4),
          va("v_mul_u32_u24", vO, "192", t0), va("v_add_u32", vO, vO, t4)]
    p += [va("v_bfe_u32", t0, vL, "3", "2"), va("v_bfe_u32", t1, vL, "1", "1"), va("v_lshl_or_b32", t0, t0, "1", t1),
          va("v_bfe_u32", t1, vL, "2", "1"),
          I(f"v_cmp_eq_u32 vcc, v{t1}, v{t3}", "valu", rd=V(t1)+V(t3), wr=["vcc"]),
          va("v_mov_b32", t2, "99"),
          I(f"v_cndmask_b32 v{t0}, v{t2}, v{t0}, vcc", "valu", rd=V(t2)+V(t0)+["vcc"], wr=V(t0)),
          va("v_and_b32", t1, "1", vL), va("v_lshlrev_b32", t1, "4", t1), va("v_mov_b32", t2, "0x3f80"),
          va("v_lshlrev_b32", t1, t1, t2)]
    for k in range(8):
        p += [I(f"v_cmp_eq_u32 vcc, {k}, v{t0}", "valu", rd=V(t0), wr=["vcc"]),
              I(f"v_cndmask_b32 v{P_IF+k}, 0, v{t1}, vcc", "valu", rd=V(t1)+["vcc"], wr=V(P_IF+k))]
    for k in range(4): p.append(va("v_mov_b32", P_ONE+k, "0x3f803f80"))
    for k in range(12):
        if k & 3: p.append(va("v_mov_b32", P_AT+k, "0"))
    return p

def job_loads_M(vA, sW, sT, sK):
    p = []
    for u in range(3):
        for s in range(6): p.append(vml(P_WK+24*u+4*s, 4, vA, sW, f"s{sK+u}", 192+32*s))
    for a in range(3):
        for s in range(6): p.append(vml(P_WQ+24*a+4*s, 4, vA, sW, f"s{sT+a}", 32*s))
    return p
def job_loads_V(vA, vO, sW, sO, sT, sK):
    p = []
    for d in range(3):
        for s in range(2): p.append(vml(16+8*d+4*s, 4, vO, sO, f"s{sK+d}", 32*s))
    for a in range(3):
        for s in range(6): p.append(vml(P_WQ+24*a+4*s, 4, vA, sW, f"s{sT+a}", 384+32*s))
    return p
def job_epi(scale, store):
    p = []
    D = P_D
    tmp = list(range(16, 16+48))
    p += tree_sum(list(range(D, D+48)), 10, tmp=tmp)
    p += [va("v_mov_b32", 11, 10), swap32(10, 11), va("v_add_f32", 10, 10, 11),
          va("v_mul_f32", 10, fbits(-scale/96), 10), va("v_mov_b32", 12, fbits(scale))]
    for k in range(48): p.append(va("v_fma_f32", D+k, D+k, 12, 10))
    for k in range(24): p.append(cvt(P_B2+k, D+2*k, D+2*k+1))
    for s in range(6): p.append(store(P_B2+4*s, s))
    return p
def job_M(store):
    p = []
    D = P_D; D2 = P_WK+24
    for d in range(3):
        n = 0
        for u in range(3):
            for s in range(2):
                p.append(m32(D+16*d, P_WK+24*u+4*(2*d+s), P_IF+4*s, D+16*d if n else None)); n += 1
    for d in range(3):
        p += tree_sum(list(range(D+16*d, D+16*d+16)), 10+d)
        p += [va("v_mul_f32", 10+d, fbits(-1/96), 10+d), va("v_cvt_pk_bf16_f32", P_AT+4*d, 10+d, "0")]
    for a in range(3):
        for s in range(6): p.append(m32(D+16*a, P_WQ+24*a+4*s, P_WK+4*s, D+16*a if s else None))
    for d in range(3):
        p.append(m32(D2+16*d, P_AT+4*d, P_ONE))
        for k in range(8): p.append(cvt(P_B2+8*d+k, D2+16*d+2*k, D2+16*d+2*k+1))
    for a in range(3):
        for s in range(6): p.append(m32(D+16*a, P_WQ+24*a+4*s, P_B2+4*s, D+16*a))
    return p + job_epi(SCALE, store)
def job_V(store):
    p = []
    D = P_D; D1 = 40
    for d in range(3):
        for s in range(2): p.append(m32(D1+16*d, 16+8*d+4*s, P_IF+4*s, D1+16*d if s else None))
        for k in range(8): p.append(cvt(P_B2+8*d+k, D1+16*d+2*k, D1+16*d+2*k+1))
    for a in range(3):
        for s in range(6): p.append(m32(D+16*a, P_WQ+24*a+4*s, P_B2+4*s, D+16*a if s else None))
    return p + job_epi(1.0, store)

def kd(name, vg=256):
    return f""".section .rodata,"a"
.p2align 6
.amdhsa_kernel {name}
  .amdhsa_next_free_vgpr {vg}
  .amdhsa_next_free_sgpr 102
  .amdhsa_accum_offset {vg}
  .amdhsa_group_segment_fixed_size 0
  .amdhsa_kernarg_size 64
  .amdhsa_user_sgpr_count 2
  .amdhsa_user_sgpr_kernarg_segment_ptr 1
  .amdhsa_system_sgpr_workgroup_id_x 1
.end_amdhsa_kernel
"""
def khead(name):
    return f".text\n.globl {name}\n.p2align 8\n.type {name},@function\n{name}:\n"

def prep_kernel():
    o = khead("prep_kernel")
    o += "    s_cmp_ge_u32 s2, 12\n    s_cbranch_scc1 Lp_end\n"
    o += "    s_load_dwordx8 s[16:23], s[0:1], 8\n    s_load_dwordx2 s[24:25], s[0:1], 56\n"
    o += """    s_mul_i32 s3, s2, 43
    s_lshr_b32 s3, s3, 7
    s_mul_i32 s26, s3, 3
    s_sub_u32 s26, s2, s26
    s_waitcnt lgkmcnt(0)
    s_cmp_ge_u32 s3, 2
    s_cselect_b32 s16, s20, s16
    s_cselect_b32 s17, s21, s17
    s_cselect_b32 s18, s22, s18
    s_cselect_b32 s19, s23, s19
"""
    p = srd(4, 16, 55296) + srd(8, 18, 18432) + srd(12, 24, 73728)
    p += [sa("s_mov_b32 s30, 0", wr=S(30)), sa("s_mov_b32 s31, 18432", wr=S(31)), sa("s_mov_b32 s32, 36864", wr=S(32)),
          sa("s_mul_i32 s36, s2, 6144", rd=S(2), wr=S(36))]
    p += prep_consts(0, 1, 2) + [va("v_lshlrev_b32", 3, "4", 0)]
    o += emit(finalize(p))
    o += "    s_and_b32 s27, s3, 1\n    s_cmp_eq_u32 s27, 1\n    s_cbranch_scc1 Lp_V\n"
    st = lambda r, s: vms(r, 4, 3, 12, "s36", 1024*s) if s < 4 else vms(r, 4, 4, 12, "s36", 1024*(s-4))
    o += """    s_mul_i32 s33, s26, 18432
    s_add_u32 s34, s33, 18432
    s_cmp_ge_u32 s34, 55296
    s_cselect_b32 s34, 0, s34
    s_add_u32 s35, s34, 18432
    s_cmp_ge_u32 s35, 55296
    s_cselect_b32 s35, 0, s35
    v_add_u32 v4, 4096, v3
"""
    seq, t = schedule(job_loads_M(1, 4, 30, 33) + job_M(st), verbose=True)
    o += emit(finalize(seq)) + "    s_endpgm\nLp_V:\n"
    o += """    s_lshl_b32 s33, s26, 6
    s_add_u32 s34, s33, 6144
    s_add_u32 s35, s33, 12288
    v_add_u32 v4, 4096, v3
"""
    seq, t = schedule(job_loads_V(1, 2, 4, 8, 30, 33) + job_V(st), verbose=True)
    o += emit(finalize(seq)) + "Lp_end:\n    s_endpgm\n"
    return o

def win_off(dst, win, t):
    return [sa(f"s_mul_i32 s{t}, s{win}, 43691", rd=S(win), wr=S(t)), sa(f"s_lshr_b32 s{t}, s{t}, 21", rd=S(t), wr=S(t)),
            sa(f"s_mul_i32 s{dst}, s{t}, {8*RS - 48*1536}", rd=S(t), wr=S(dst)),
            sa(f"s_mul_i32 s{t}, s{win}, 1536", rd=S(win), wr=S(t)),
            sa(f"s_add_u32 s{dst}, s{dst}, s{t}", rd=S(dst)+S(t), wr=S(dst)+["scc"])]

def poll(lbl, tmp, aw, off, starget):
    return f"""    s_mov_b32 s19, 0x100000
{lbl}:
    ds_read_b32 v{tmp}, v{aw} offset:{off}
    s_sub_u32 s19, s19, 1
    s_cbranch_scc1 {lbl}_x
    s_waitcnt lgkmcnt(0)
    v_cmp_le_u32 vcc, s{starget}, v{tmp}
    s_nop 0
    s_and_b32 s41, vcc_lo, 15
    s_cmp_lg_u32 s41, 15
    s_cbranch_scc1 {lbl}
{lbl}_x:
"""
def signal(aw, off, pre="", rd=(), wr=(), minT=0):
    return I(pre + f"s_lshl_b64 exec, 1, s16\n    ds_inc_u32 v{aw}, v{aw} offset:{off}\n    s_mov_b64 exec, -1", "dsw", rd=V(aw)+list(rd), wr=list(wr)+["scc"], minT=minT)

T_AX, T_AW, T_AR, T_DV, T_I4, T_SEL, T_TMP = 1, 5, 6, 7, 10, 12, 20
T_XF, T_GV, T_MT, T_D, T_WB, T_PF = 32, 80, 128, 176, 224, 240
def cnd(d, a, b, m):
    at, ar = opnd(a); bt, br = opnd(b)
    return I(f"v_cndmask_b32 v{d}, {at}, {bt}, s[{m}:{m+1}]", "valu", rd=ar+br+S(m,2), wr=V(d))

def s_dma(sw, dep=()):
    p = []
    for ip in range(4):
        for u in range(3):
            p.append(sa(f"s_add_u32 m0, s35, {1024*(3*ip+u)}", rd=S(35), wr=["m0", "scc"]))
            p.append(dma(S_DV+u, 4, f"s{sw}", 0, "nt", mem=dep))
            p.append(va("v_xor_b32", S_DV+u, "32", S_DV+u))
        if ip < 3: p.append(sa(f"s_add_u32 s{sw}, s{sw}, {2*RS}", rd=S(sw), wr=S(sw)+["scc"]))
    return p

def t_stats(rdst):
    p = []
    SM, GA = T_TMP, T_TMP+4
    for s in range(6):
        for tau in range(2):
            x = T_XF+24*tau+4*s
            p.append(m16(SM, T_SEL+4*tau, x, SM if (s or tau) else None))
            for q in range(2):
                p.append(m4(GA+4*tau, x+2*q, x+2*q, GA+4*tau if (s or q) else None))
    for tau in range(2):
        g = GA+4*tau
        for k in range(1, 4): p.append(cnd(g, g, g+k, 28+2*(k-1)))
    p += [swap32(GA, GA+4), va("v_add_f32", GA, GA, GA+4), va("v_mul_f32", SM, fbits(1/96), SM),
          va("v_mul_f32", SM, SM, SM), va("v_mov_b32", SM+1, fbits(1/96)), va("v_fma_f32", GA, GA, SM+1, f"-v{SM}"),
          va("v_max_f32", GA, "0", GA), va("v_add_f32", GA, fbits(1e-5), GA), va("v_rsq_f32", rdst, GA)]
    return p

def t_body(o):
    p = []
    XF, GV, D, WB, PF = T_XF, T_GV, T_D, T_WB, T_PF
    R = 0
    xa = lambda tau, s: (T_AX + 2*tau + (s & 1), 1536*tau + 64*(s >> 1))
    for s in range(6):
        for tau in range(2):
            a, off = xa(tau, s); p.append(dsr(XF+24*tau+4*s, 4, a, off))
    p += t_stats(R)
    wb = [0]
    def wread(f):
        r = WB + 4*(wb[0] % 4); wb[0] += 1
        p.append(dsr(r, 4, T_AW, 1024*f)); return r
    dn = [0]
    def dt():
        r = D + 16*(dn[0] % 3); dn[0] += 1; return r
    def cv16(dst, d):
        for k in range(8): p.append(cvt(dst+k, d+2*k, d+2*k+1))
    SS = PF
    def smf(rho, tau):
        for s in (2*rho, 2*rho+1):
            for q in range(2):
                p.append(m4(SS+4*tau, XF+24*tau+4*s+2*q, GV+24*tau+4*s+2*q, SS+4*tau if (s or q) else None))
    for rho in range(2):
        for tau in range(2):
            d = dt()
            for s in range(6): p.append(m32(d, T_MT+24*rho+4*s, XF+24*tau+4*s, d if s else None))
            cv16(GV+24*tau+8*rho, d); smf(rho, tau)
    d2 = [dt(), dt()]
    for s in range(6):
        w = wread(F_MT2+s)
        for tau in range(2): p.append(m32(d2[tau], w, XF+24*tau+4*s, d2[tau] if s else None))
    for tau in range(2):
        cv16(GV+24*tau+16, d2[tau]); smf(2, tau)
    t = T_TMP; mx = T_TMP+4; l = T_TMP+5; pa = T_TMP+6
    for i in range(4):
        p += [swap32(SS+i, SS+4+i), va("v_add_f32", SS+i, SS+i, SS+4+i), dpp("v_mul_f32", t+i, R, SS+i, f"quad_perm:[{i},{i},{i},{i}]")]
    p += [va("v_max3_f32", mx, t, t+1, t+2), va("v_max_f32", mx, mx, t+3), va("v_mul_f32", mx, f"-v{R}", mx)]
    for i in range(4): p += [va("v_fma_f32", t+i, t+i, R, mx), va("v_exp_f32", t+i, t+i)]
    p += [va("v_add_f32", l, t, t+1), va("v_add_f32", mx, t+2, t+3), va("v_add_f32", l, l, mx), va("v_rcp_f32", l, l)]
    for i in range(4): p += [va("v_mul_f32", t+i, t+i, l), dpp("v_mul_f32", t+i, R, t+i, f"quad_perm:[{i},{i},{i},{i}]")]
    p += [cvt(pa, t, t+1), cvt(pa+1, t+2, t+3), va("v_mov_b32", pa+2, pa), va("v_mov_b32", pa+3, pa+1),
          swap32(pa, pa+2), swap32(pa+1, pa+3)]
    for rho in range(3):
        d2 = [dt(), dt()]
        for s in range(6):
            w = wread(F_VT+6*rho+s)
            for tau in range(2): p.append(m32(d2[tau], XF+24*tau+4*s, w, d2[tau] if s else None))
        for tau in range(2): cv16(GV+24*tau+8*rho, d2[tau])
    for tau in range(2):
        for g in range(4):
            for q in range(2): p.append(cnd(PF+8*tau+2*g+q, "0", pa+2*tau+q, 20+2*g))
    for rho in range(3):
        for tau in range(2):
            d = dt()
            for g in range(4): p.append(m4(d+4*g, T_I4, XF+24*tau+8*rho+2*g))
            for s2 in range(2): p.append(m32(d, GV+24*tau+8*rho+4*s2, PF+8*tau+4*s2, d))
            cv16(XF+24*tau+8*rho, d)
            for s in (2*rho, 2*rho+1):
                a, off = xa(tau, s); p.append(dsw(a, XF+24*tau+4*s, 4, off))
    p += t_stats(R)
    p.append(dsw(T_AR, R, 1, 0))
    p.append(va("v_add_u32", T_AR, "s40", T_AR))
    for k in range(4): p.append(va("v_add_u32", T_AX+k, "s34", T_AX+k))
    return p

S_AE, S_AW, S_RKA, S_VO, S_DV = 0, 2, 3, 4, 5
S_XF, S_GF, S_VF, S_SD, S_RK, S_WB = 8, 56, 104, 152, 216, 248
def s_body(o):
    p = []
    XF, GF, VF, SD, RK = S_XF, S_GF, S_VF, S_SD, S_RK
    for s in range(6):
        for tau in range(2):
            p.append(dsr(XF+24*tau+4*s, 4, S_AE+(s & 1), 6144*tau+64*(s >> 1)))
    p += s_dma(38, dep=V(XF, 48))
    for k in range(2): p.append(va("v_add_u32", S_AE+k, "s34", S_AE+k))
    st = lambda tau, s: vms(XF+24*tau+4*s, 4, S_VO, 8, f"s{36+tau}", 32*s)
    if o.dbg_x1:
        p.append(signal(S_AW, FD, pre="s_waitcnt vmcnt(0)\n    ", rd=["M:dma"], wr=["M:vms"]))
        for tau in range(2):
            for s in range(6): p.append(st(tau, s))
        return p
    def cv16(dst, d):
        for k in range(8): p.append(cvt(dst+k, d+2*k, d+2*k+1))
    for rho in range(3):
        d2 = [SD+32*(rho & 1), SD+32*(rho & 1)+16]
        for s in range(6):
            w = VF + 4*((6*rho+s) % 12)
            p.append(dsr(w, 4, S_AW, 1024*(F_MS+6*rho+s)))
            for tau in range(2): p.append(m32(d2[tau], w, XF+24*tau+4*s, d2[tau] if s else None))
        for tau in range(2): cv16(GF+24*tau+8*rho, d2[tau])
    for tau in (1, 0):
        for kap in range(2):
            d = SD+32*tau+16*kap
            for s in range(6): p.append(m32(d, XF+24*kap+4*s, GF+24*tau+4*s, d if s else None))
    TM = GF+32
    for k in range(8): p.append(dsr(RK+4*k, 4, S_RKA, 32*k))
    p += [va("v_lshrrev_b32", TM+3, "2", S_AW), va("v_add_u32", TM+3, "s39", TM+3), dsr(TM+3, 1, TM+3, 0),
          va("v_mov_b32", TM+7, TM+3), swap32(TM+3, TM+7), va("v_add_u32", S_RKA, "s40", S_RKA)]
    wbs = [S_WB, S_WB+4, GF+40, GF+44]
    def softmax(tau):
        q = []
        b = SD+32*tau; mx = TM+4*tau; l = mx+1; t2 = mx+2; rq = mx+3
        for k in range(32): q.append(va("v_mul_f32", b+k, b+k, RK+k))
        q += [va("v_max3_f32", mx, b, b+1, b+2), va("v_max3_f32", t2, b+3, b+4, b+5)]
        for k in range(6, 30, 4):
            q += [va("v_max3_f32", mx, mx, b+k, b+k+1), va("v_max3_f32", t2, t2, b+k+2, b+k+3)]
        q += [va("v_max3_f32", mx, mx, b+30, b+31), va("v_max_f32", mx, mx, t2), va("v_mov_b32", t2, mx), swap32(mx, t2),
              va("v_max_f32", mx, mx, t2), va("v_mul_f32", mx, f"-v{rq}", mx)]
        for k in range(32):
            q += [va("v_fma_f32", b+k, b+k, rq, mx), va("v_exp_f32", b+k, b+k)]
            if k == 1: q.append(va("v_add_f32", l, b, b+1))
            elif k == 3: q.append(va("v_add_f32", t2, b+2, b+3))
            elif k > 3: q.append(va("v_add_f32", l if k & 1 else t2, l if k & 1 else t2, b+k))
            if k & 1 and k >= 3:
                for kk in ((0, 2) if k == 3 else (k-1,)):
                    q += [va("v_mul_f32", b+kk, b+kk, RK+kk), va("v_mul_f32", b+kk+1, b+kk+1, RK+kk+1), cvt(b+kk//2, b+kk, b+kk+1)]
        q += [va("v_add_f32", l, l, t2), va("v_mov_b32", t2, l), swap32(l, t2), va("v_add_f32", l, l, t2), va("v_rcp_f32", l, l)]
        return q
    sm = softmax(1) + softmax(0)
    vp = []; n = 0; wn = 0
    for rho in range(3):
        if o.vshare:
            for s in range(6):
                w = wbs[wn % 4]; wn += 1
                vp.append(dsr(w, 4, S_AW, 1024*(F_VS+6*rho+s)))
                for kap in range(2): vp.append(m32(GF+16*kap, XF+24*kap+4*s, w, GF+16*kap if s else None))
            for kap in range(2):
                for k in range(8): vp.append(cvt(VF+16*rho+8*kap+k, GF+16*kap+2*k, GF+16*kap+2*k+1))
        else:
            for kap in range(2):
                d = GF+16*kap
                for s in range(6):
                    w = wbs[wn % 4]; wn += 1
                    vp.append(dsr(w, 4, S_AW, 1024*(F_VS+6*rho+s)))
                    vp.append(m32(d, XF+24*kap+4*s, w, d if s else None))
                for k in range(8): vp.append(cvt(VF+16*rho+8*kap+k, d+2*k, d+2*k+1))
    i = j = 0
    while i < len(sm) or j < len(vp):
        if j >= len(vp) or (i < len(sm) and i*len(vp) <= j*len(sm)): p.append(sm[i]); i += 1
        else: p.append(vp[j]); j += 1
    p.append(signal(S_AW, FD, pre="s_waitcnt vmcnt(0)\n    ", rd=["M:dma"]+V(RK, 32)+V(TM+7), wr=["M:vms"], minT=o.sigD))
    ot = [SD+48, GF, GF+16, RK, RK+16, SD+16]
    n = 0; tn = 0
    for tau in (1, 0):
        l = TM+4*tau+1
        tmps = [TM+4*tau, TM+4*tau+2, TM+4*tau+3] + ([] if tau else V8(S_WB))
        for rho in range(3):
            d = ot[n]; n += 1
            for kk in range(4): p.append(m32(d, VF+16*rho+4*kk, SD+32*tau+4*kk, d if kk else None))
            for k in range(8):
                x = XF+24*tau+8*rho+k
                t = tmps[tn % len(tmps)]; u = tmps[(tn+1) % len(tmps)]; tn += 2
                p += [va("v_lshlrev_b32", t, "16", x), va("v_fma_f32", d+2*k, d+2*k, l, t), va("v_and_b32", u, "s42", x),
                      va("v_fma_f32", d+2*k+1, d+2*k+1, l, u), cvt(d+k, d+2*k, d+2*k+1)]
            p += [vms(d+4*q, 4, S_VO, 8, f"s{36+tau}", 32*(2*rho+q)) for q in range(2)]
    return p
def V8(b): return list(range(b, b+8))

def main_kernel(o):
    a = khead(KNAME)
    a += f"    s_cmp_ge_u32 s2, {NWG}\n    s_cbranch_scc1 L_end\n"
    a += "    s_load_dwordx2 s[42:43], s[0:1], 0\n    s_load_dwordx2 s[44:45], s[0:1], 40\n    s_load_dwordx2 s[46:47], s[0:1], 56\n"
    a += "    v_lshrrev_b32 v1, 6, v0\n    v_and_b32 v0, 63, v0\n    s_nop 0\n    v_readfirstlane_b32 s16, v1\n    s_waitcnt lgkmcnt(0)\n"
    a += emit(srd(4, 42, XB) + srd(8, 44, XB) + srd(12, 46, 73728))
    a += "    s_mov_b32 s48, 0\n    s_mov_b32 s49, s16\n" + emit(stamp(o))
    if o.prof: a += "    s_memrealtime s[44:45]\n    s_waitcnt lgkmcnt(0)\n    s_mov_b32 s98, s44\n"
    a += "    s_mov_b32 s17, 0\n    s_mov_b32 s18, s2\n    s_mov_b32 s34, 49152\n    s_mov_b32 s40, 1152\n    s_cmp_ge_u32 s16, 4\n    s_cbranch_scc1 L_S\n"
    a += "    s_mov_b32 s97, 0\n"
    p = []
    L = 0; t0, t1, t2, t3, t4 = 20, 21, 22, 23, 24
    p.append(va("v_lshlrev_b32", T_AW, "4", L))
    p += [sa("s_mul_i32 s19, s16, 6144", rd=S(16), wr=S(19)), sa(f"s_add_u32 s35, s19, {LW}", rd=S(19), wr=S(35)+["scc"]),
          sa("s_add_u32 s19, s19, 12288", rd=S(19), wr=S(19)+["scc"])]
    for k in range(6):
        p += [sa(f"s_add_u32 m0, s35, {1024*k}", rd=S(35), wr=["m0", "scc"]), dma(T_AW, 12, "s19", 0),
              sa("s_add_u32 s19, s19, 1024", rd=S(19), wr=S(19)+["scc"])]
    for k in range(12):
        p.append(sa(f"s_mov_b32 s19, {1024*k}", wr=S(19))); p.append(vml(T_MT+4*k, 4, T_AW, 12, "s19", 0))
    p.append(va("v_add_u32", T_AW, str(LW), T_AW))
    p += [va("v_mov_b32", t0, "1"), va("v_mov_b32", t1, "0"), dsw(T_AW, t0, 2, FD)]
    p += [sa("s_lshl_b32 s41, s16, 1", rd=S(16), wr=S(41)+["scc"]), sa("s_mul_i32 s35, s16, 3072", rd=S(16), wr=S(35)),
          va("v_and_b32", t0, "3", L), va("v_bfe_u32", t1, L, "2", "3"), va("v_lshrrev_b32", t2, "5", L),
          va("v_xor_b32", t3, t0, t2), va("v_xor_b32", t3, "s41", t3), va("v_and_b32", t3, "3", t3), va("v_lshlrev_b32", t3, "4", t3),
          va("v_mul_u32_u24", t4, "12288", t0), va("v_add_u32", t3, t3, t4), va("v_mul_u32_u24", t4, "192", t1),
          va("v_add3_u32", T_AX, t3, t4, "s35"), va("v_xor_b32", T_AX+1, "32", T_AX), va("v_xor_b32", T_AX+2, "16", T_AX),
          va("v_xor_b32", T_AX+3, "48", T_AX),
          va("v_mul_u32_u24", t3, "72", t0), va("v_lshl_add_u32", t3, t2, "3", t3), va("v_add_u32", t3, t3, t1),
          sa("s_lshl_b32 s19, s16, 6", rd=S(16), wr=S(19)+["scc"]), sa(f"s_add_u32 s19, s19, {LR}", rd=S(19), wr=S(19)+["scc"]),
          va("v_lshl_add_u32", T_AR, t3, "2", "s19"),
          va("v_and_b32", t3, "1", L), va("v_lshlrev_b32", t3, "4", t3), va("v_mov_b32", t4, "0x3f80"), va("v_lshlrev_b32", t3, t3, t4),
          I(f"v_cmp_gt_u32 vcc, 2, v{t0}", "valu", rd=V(t0), wr=["vcc"]),
          I(f"v_cndmask_b32 v{T_I4}, 0, v{t3}, vcc", "valu", rd=V(t3)+["vcc"], wr=V(T_I4)),
          I(f"v_cndmask_b32 v{T_I4+1}, v{t3}, 0, vcc", "valu", rd=V(t3)+["vcc"], wr=V(T_I4+1)),
          va("v_mov_b32", t4, "0x3f803f80")]
    m0 = sum(1 << (r+16*q) for r in range(8) for q in range(4) if (q & 1) == (r >> 2))
    for tau in range(2):
        m = m0 << (8*tau)
        p += [sa(f"s_mov_b32 s20, 0x{m & 0xffffffff:x}", wr=S(20)), sa(f"s_mov_b32 s21, 0x{m >> 32:x}", wr=S(21))]
        for k in range(4): p.append(cnd(T_SEL+4*tau+k, "0", t4, 20))
    for g in range(4):
        p += [sa(f"s_mov_b32 s{20+2*g}, 0x{0xF << (8*g):x}", wr=S(20+2*g)), sa(f"s_mov_b32 s{21+2*g}, 0x{0xF0 << (8*g):x}", wr=S(21+2*g))]
    for k in range(1, 4):
        m = 0x11111111 << k
        p += [sa(f"s_mov_b32 s{26+2*k}, 0x{m:x}", wr=S(26+2*k)), sa(f"s_mov_b32 s{27+2*k}, 0x{m:x}", wr=S(27+2*k))]
    a += emit(finalize(p))
    a += f"    s_mov_b32 s36, 1\n    s_waitcnt vmcnt(0) lgkmcnt(0)\n    s_barrier\n    s_setprio {o.prioT}\nL_Tloop:\n"
    a += emit(stamp(o)) + poll("L_Tp", T_TMP, T_AW, FD, 36) + emit(stamp(o))
    seq, t = schedule(t_body(o), G32=o.G32T, dslat=o.dslat, verbose=True)
    a += emit(fine(o, dynprio(finalize(seq), o.dynT), 8))
    a += emit([signal(T_AW, FX)])
    a += emit(stamp(o) + stamp(o) + stamp(o))
    a += f"    s_sub_u32 s34, 0, s34\n    s_sub_u32 s40, 0, s40\n    s_add_u32 s36, s36, 1\n    s_add_u32 s17, s17, 1\n    s_cmp_lt_u32 s17, {NWIN}\n    s_cbranch_scc1 L_Tloop\n"
    a += emit(stamp(o)) + prof_out(o) + "    s_endpgm\n"
    a += "L_S:\n    s_mov_b32 s97, 8\n"
    t0, t1, t2, t3, t4 = 20, 21, 22, 23, 24
    p = [sa("s_sub_u32 s16, s16, 4", rd=S(16), wr=S(16)+["scc"])]
    p += win_off(38, 18, 19)
    p += [sa("s_mul_i32 s35, s16, 12288", rd=S(16), wr=S(35)), sa(f"s_mul_i32 s39, s16, {FS}", rd=S(16), wr=S(39))]
    for u in range(3):
        v = S_DV+u
        p += [va("v_add_u32", t0, str(64*u), L), I(f"v_cmp_le_u32 vcc, 96, v{t0}", "valu", rd=V(t0), wr=["vcc"]),
              I(f"v_cndmask_b32 v{t1}, 0, 1, vcc", "valu", rd=["vcc"], wr=V(t1)),
              va("v_mul_u32_u24", t2, "96", t1), va("v_sub_u32", t0, t0, t2),
              va("v_mul_u32_u24", t2, "43", t0), va("v_lshrrev_b32", t2, "9", t2),
              va("v_mul_u32_u24", t3, "12", t2), va("v_sub_u32", t3, t0, t3),
              va("v_xor_b32", t4, t3, t1), va("v_xor_b32", t4, "s16", t4), va("v_and_b32", t4, "3", t4),
              va("v_and_b32", t3, "12", t3), va("v_or_b32", t3, t3, t4),
              va("v_mul_u32_u24", t2, "12", t2), va("v_add_u32", t3, t3, t2), va("v_lshlrev_b32", t3, "4", t3),
              va("v_mul_u32_u24", t1, str(RS), t1), va("v_add3_u32", v, t3, t1, "s39")]
    p += s_dma(38)
    p += [va("v_lshlrev_b32", S_AW, "4", L),
          sa("s_mul_i32 s19, s16, 9216", rd=S(16), wr=S(19)), sa(f"s_add_u32 s36, s19, {LW+24576}", rd=S(19), wr=S(36)+["scc"]),
          sa(f"s_add_u32 s19, s19, {12288+24576}", rd=S(19), wr=S(19)+["scc"])]
    for k in range(9):
        p += [sa(f"s_add_u32 m0, s36, {1024*k}", rd=S(36), wr=["m0", "scc"]), dma(S_AW, 12, "s19", 0),
              sa("s_add_u32 s19, s19, 1024", rd=S(19), wr=S(19)+["scc"])]
    p += [sa(f"s_add_u32 s36, s18, {NWG}", rd=S(18), wr=S(36)+["scc"])] + win_off(38, 36, 19)
    p += [sa("s_add_u32 s35, s35, s34", rd=S(35)+S(34), wr=S(35)+["scc"])]
    p += s_dma(38)
    p += [sa("s_sub_u32 s35, s35, s34", rd=S(35)+S(34), wr=S(35)+["scc"])]
    p += [va("v_add_u32", S_AW, str(LW), S_AW),
          va("v_and_b32", t0, "7", L), va("v_bfe_u32", t1, L, "3", "2"), va("v_lshrrev_b32", t2, "5", L),
          va("v_mul_u32_u24", t3, "192", t0), va("v_mul_u32_u24", t4, str(RS), t1), va("v_add3_u32", S_VO, t3, t4, "s39"),
          va("v_lshl_add_u32", S_VO, t2, "4", S_VO),
          sa("s_mul_i32 s19, s16, 288", rd=S(16), wr=S(19)), sa(f"s_add_u32 s19, s19, {LR}", rd=S(19), wr=S(19)+["scc"]),
          va("v_lshl_add_u32", S_RKA, t2, "4", "s19"), sa(f"s_sub_u32 s39, s19, {LW//4}", rd=S(19), wr=S(39)+["scc"]),
          va("v_xor_b32", t2, t2, t1), va("v_xor_b32", t2, "s16", t2), va("v_and_b32", t2, "3", t2), va("v_lshl_add_u32", t3, t2, "4", t3),
          va("v_mul_u32_u24", t4, "1536", t1),
          va("v_add3_u32", S_AE, t3, t4, "s35"), va("v_xor_b32", S_AE+1, "32", S_AE),
          sa("s_mov_b32 s42, 0xffff0000", wr=S(42)), sa("s_mov_b32 s43, 1", wr=S(43))]
    a += emit(finalize(p))
    a += f"    s_waitcnt vmcnt(12)\n    s_barrier\n    s_setprio {o.prioS}\n    s_waitcnt vmcnt(0)\n" + emit([signal(S_AW, FD)]) + "L_Sloop:\n"
    p = win_off(36, 18, 19) + [sa(f"s_add_u32 s37, s36, {4*RS}", rd=S(36), wr=S(37)+["scc"]),
         sa(f"s_add_u32 s18, s18, {NWG}", rd=S(18), wr=S(18)+["scc"]), sa(f"s_add_u32 s41, s18, {NWG}", rd=S(18), wr=S(41)+["scc"])]
    p += win_off(38, 41, 19)
    p += [sa(f"s_cmp_ge_u32 s17, {NWIN-2}", rd=S(17), wr=["scc"]), sa("s_cselect_b32 s38, 0x7000000, s38", rd=S(38)+["scc"], wr=S(38))]
    a += emit(stamp(o)) + emit(p) + poll("L_Sp", 20, S_AW, FX, 43) + emit(stamp(o))
    seq, t = schedule(s_body(o), G32=o.G32S, dslat=o.dslat, verbose=True)
    a += emit(fine(o, dynprio(finalize(seq), o.dynS), 12))
    a += emit(stamp(o) + stamp(o) + stamp(o))
    a += f"    s_add_u32 s35, s35, s34\n    s_add_u32 s39, s39, s40\n    s_sub_u32 s34, 0, s34\n    s_sub_u32 s40, 0, s40\n    s_add_u32 s43, s43, 1\n    s_add_u32 s17, s17, 1\n    s_cmp_lt_u32 s17, {NWIN}\n    s_cbranch_scc1 L_Sloop\n"
    a += emit(stamp(o)) + prof_out(o)
    a += "L_end:\n    s_endpgm\n"
    return a

def build(o):
    h = f"; @launch kernel=prep_kernel grid=(12,1,1) block=(64,1,1) lds=0\n; @launch kernel={KNAME} grid=({NWG},1,1) block=(512,1,1) lds={LDSZ}\n"
    h += '.amdgcn_target "amdgcn-amd-amdhsa--gfx950"\n'
    return h + prep_kernel() + main_kernel(o) + kd("prep_kernel") + kd(KNAME)

if __name__ == "__main__":
    out = sys.argv[1]
    kw = {}
    for x in sys.argv[2:]:
        k, v = x.split("="); kw[k] = eval(v)
    open(out, "w").write(build(Opt(**kw)))
```

```python
import sys
sys.path.insert(0, "work")
from asmlib import *
import gen as G2
from gen import FS, RS, XB, NWG, NWIN, LW, LR, LF, LDSZ, FD, FX, F_MT2, F_VT, F_MS, F_VS, KNAME, fbits, stamp, prof_out, fine, dynprio, srd, kd, khead, prep_kernel, win_off, poll, signal, cnd

class Opt:
    dslat = 200; dslatT = 160
    gA = 32; gC = 44; gD = 44; gE = 32
    epre = 0
    prioT = 0; prioS = 1
    prof = False
    dynT = None; dynS = None
    dma0 = 2; dmastep = 2
    flg = 6; chk = 11
    show = False
    vlat = 8
    def __init__(s, **k):
        for a, b in k.items():
            assert hasattr(s, a), a
            setattr(s, a, b)

def check(lbl, tmp, starget, rd=(), wr=()):
    return I(f"v_cmp_le_u32 vcc, s{starget}, v{tmp}\n    s_nop 0\n    s_and_b32 s41, vcc_lo, 15\n    s_cmp_lg_u32 s41, 15\n    s_cbranch_scc1 {lbl}_slow\n{lbl}_back:", "chk", rd=V(tmp)+list(rd), wr=list(wr))
def slow(lbl, tmp, aw, off, starget):
    return f"""{lbl}_slow:
    s_mov_b32 s19, 0x100000
{lbl}_sl:
    ds_read_b32 v{tmp}, v{aw} offset:{off}
    s_waitcnt lgkmcnt(0)
    s_sub_u32 s19, s19, 1
    s_cbranch_scc1 {lbl}_back
    v_cmp_le_u32 vcc, s{starget}, v{tmp}
    s_nop 0
    s_and_b32 s41, vcc_lo, 15
    s_cmp_lg_u32 s41, 15
    s_cbranch_scc1 {lbl}_sl
    s_branch {lbl}_back
"""
def sig(aw, off, rd=(), wr=(), note=""):
    i = I(f"s_lshl_b64 exec, 1, s16\n    ds_inc_u32 v{aw}, v{aw} offset:{off}\n    s_mov_b64 exec, -1", "dsw", rd=V(aw)+list(rd), wr=list(wr))
    i.note = note
    return i
def swap16(a, b):
    return I(f"v_permlane16_swap_b32 v{a}, v{b}", "perm", rd=V(a)+V(b), wr=V(a)+V(b), dpp=V(a)+V(b))
def gp(i, g):
    i.gap = g; return i
def show(seq, title):
    print("---", title)
    nv = 0; no = 0; line = []
    for i in seq:
        if is_mf(i):
            line.append(f"{i.note or i.kind}@{i.cnt}[{nv},{no}]"); nv = 0; no = 0
        elif is_valu(i): nv += 2 if i.kind in ("trans", "perm") else 1
        else: no += i.cnt if i.kind == "nop" else 1
    line.append(f"end[{nv},{no}]")
    for k in range(0, len(line), 8): print(" ".join(line[k:k+8]))

T_R, T_AX, T_AW, T_AR, T_FL, T_R2, T_I4, T_SEL, T_TMP = 0, 1, 5, 6, 7, 8, 10, 12, 20
T_XF, T_VB, T_MT, T_D, T_WB, T_PF = 32, 80, 128, 176, 224, 240
SM, GA = T_TMP, T_TMP+4
def nm(i, s):
    i.note = s; return i
def t_stat_mf(chunks, first):
    a = []; b = []
    for tau, s in chunks:
        x = T_XF+24*tau+4*s
        a.append(nm(m16(SM, T_SEL+4*tau, x, None if "s" in first else SM), "st16")); first.discard("s")
        for q in range(2):
            b.append(nm(m4(GA+4*tau, x+2*q, x+2*q, None if tau in first else GA+4*tau), "st4")); first.discard(tau)
    p = []
    for k in range(len(a)): p += [b[2*k], a[k], b[2*k+1]]
    return p
def t_chain(rdst):
    p = []
    for tau in range(2):
        g = GA+4*tau
        for k in range(1, 4): p.append(cnd(g, g, g+k, 28+2*(k-1)))
    p += [va("v_mul_f32", SM, fbits(1/96), SM), va("v_mul_f32", SM, SM, SM), va("v_mov_b32", SM+1, fbits(1/96)),
          swap32(GA, GA+4), va("v_add_f32", GA, GA, GA+4), va("v_fma_f32", GA, GA, SM+1, f"-v{SM}"),
          va("v_max_f32", GA, "0", GA), va("v_add_f32", GA, fbits(1e-5), GA), va("v_rsq_f32", rdst, GA)]
    return p
def t_rout():
    return t_chain(T_R2) + [dsw(T_AR, T_R2, 1, 0, mem=["M:r"]), sig(T_AW, FX, rd=["M:r"], wr=["M:fx"])]

def t_body(o):
    p = []
    XF, VB, WB, PF, R = T_XF, T_VB, T_WB, T_PF, T_R
    A, B, C = T_D, T_D+16, T_D+32
    xa = lambda tau, s: (T_AX + 2*tau + (s & 1), 1536*tau + 64*(s >> 1))
    for tau in range(2):
        for s in range(6):
            a, off = xa(tau, s); p.append(dsr(XF+24*tau+4*s, 4, a, off))
    p += t_rout()
    wb = [0]
    def wread(f):
        r = WB + 4*(wb[0] % 4); wb[0] += 1
        p.append(dsr(r, 4, T_AW, 1024*f)); return r
    def cv16(dst, d, rev=False):
        for k in (range(7, -1, -1) if rev else range(8)): p.append(cvt(dst+k, d+2*k, d+2*k+1))
    SS = PF
    def smf(rho):
        for s in (2*rho, 2*rho+1):
            for q in range(2):
                for tau in range(2):
                    p.append(nm(m4(SS+4*tau, XF+24*tau+4*s+2*q, VB+16*rho+8*tau+4*(s & 1)+2*q, SS+4*tau if (s or q) else None), f"smf{rho}"))
    def Gm(d, rho, tau):
        for s in range(6): p.append(nm(m32(d, T_MT+24*rho+4*s, XF+24*tau+4*s, d if s else None), f"G{rho}{tau}"))
        cv16(VB+16*rho+8*tau, d)
    Gm(A, 0, 0); Gm(B, 0, 1)
    p += t_stat_mf([(tau, s) for s in range(6) for tau in range(2)], {"s", 0, 1})
    p += t_chain(R)
    Gm(C, 1, 0); smf(0); Gm(A, 1, 1)
    for s in range(6):
        w = wread(F_MT2+s)
        for tau in range(2): p.append(nm(m32((B, C)[tau], w, XF+24*tau+4*s, (B, C)[tau] if s else None), f"G2{tau}"))
        if s == 2: smf(1)
    for tau in range(2): cv16(VB+32+8*tau, (B, C)[tau])
    t = T_TMP; mx = T_TMP+4; l = T_TMP+5; pa = T_TMP+6
    def softmax():
        for i in range(4):
            p.extend([swap32(SS+i, SS+4+i), va("v_add_f32", SS+i, SS+i, SS+4+i), dpp("v_mul_f32", t+i, R, SS+i, f"quad_perm:[{i},{i},{i},{i}]")])
        p.extend([va("v_max3_f32", mx, t, t+1, t+2), va("v_max_f32", mx, mx, t+3), va("v_mul_f32", mx, f"-v{R}", mx)])
        for i in range(4): p.extend([va("v_fma_f32", t+i, t+i, R, mx), va("v_exp_f32", t+i, t+i)])
        p.extend([va("v_add_f32", l, t, t+1), va("v_add_f32", mx, t+2, t+3), va("v_add_f32", l, l, mx), va("v_rcp_f32", l, l)])
        for i in range(4): p.extend([dpp("v_mul_f32", t+i, R, t+i, f"quad_perm:[{i},{i},{i},{i}]"), va("v_mul_f32", t+i, t+i, l)])
        p.extend([cvt(pa, t, t+1), cvt(pa+1, t+2, t+3), va("v_mov_b32", pa+2, pa), va("v_mov_b32", pa+3, pa+1),
                  swap32(pa, pa+2), swap32(pa+1, pa+3)])
        for tau in range(2):
            for g in range(4):
                for q in range(2): p.append(cnd(PF+8*tau+2*g+q, "0", pa+2*tau+q, 20+2*g))
    flg = None
    for rho in range(3):
        d2 = [(A, B, C)[rho], VB+16*rho]
        for s in range(6):
            w = wread(F_VT+6*rho+s)
            for tau in range(2): p.append(nm(m32(d2[tau], XF+24*tau+4*s, w, d2[tau] if s else None), f"V{rho}{tau}"))
            if rho == 0 and s == 1: smf(2); softmax()
            if rho == 2 and s == 0:
                f = dsr(T_FL, 1, T_AW, FD); f.after = p[-1]; p.append(f)
        cv16(VB+16*rho+8, d2[1], rev=True); cv16(VB+16*rho, d2[0])
    tiles = [(0, 0, A), (0, 1, B), (1, 0, WB), (1, 1, C), (2, 0, A), (2, 1, B)]
    def init(k):
        rho, tau, d = tiles[k]
        for g in range(4): p.append(nm(m4(d+4*g, T_I4, XF+24*tau+8*rho+2*g), f"in{k}"))
    def pv(k):
        rho, tau, d = tiles[k]
        for s2 in range(2): p.append(nm(m32(d, VB+16*rho+8*tau+4*s2, PF+8*tau+4*s2, d), f"PV{k}"))
        cv16(XF+24*tau+8*rho, d)
        for s in (2*rho, 2*rho+1):
            a, off = xa(tau, s); p.append(dsw(a, XF+24*tau+4*s, 4, off, mem=[f"M:x{k}{s}"]))
    first = {"s", 0, 1}
    def st(k):
        rho, tau, d = tiles[k]
        p.extend(t_stat_mf([(tau, 2*rho), (tau, 2*rho+1)], first))
    init(0); init(1); pv(0); init(2); pv(1); init(3); pv(2); st(0); pv(3); init(4); st(1); pv(4); init(5); st(2); pv(5); st(3); st(4)
    p.append(sig(T_AW, FX, rd=[f"M:x{k}{2*tiles[k][0]+q}" for k in range(6) for q in range(2)], wr=["M:fx"]))
    st(5)
    for k in range(4): p.append(va("v_add_u32", T_AX+k, "s34", T_AX+k))
    c = check("L_Tc", T_FL, 36, rd=["M:fx"]); c.after = p[-5]; p.append(c)
    return p

S_AE, S_AW, S_RKA, S_VO, S_DV, S_I4, S_TM, S_RQA = 0, 2, 3, 4, 5, 8, 10, 18
S_XF, S_GF, S_VF, S_SD, S_RK, S_WB = 20, 68, 92, 140, 204, 236
SD0, SD1 = S_SD, S_SD+32
GLOC = [S_WB+4*k for k in range(5)] + [SD0+16+4*k for k in range(4)] + [S_RK+4*k for k in range(8)] + [S_GF+16]
ETILE = [S_GF, SD1+16, SD1]
def s_dmas(sw, dep=()):
    g = []
    for n, ip in enumerate((0, 2, 1, 3)):
        for u in range(3):
            q = [sa(f"s_add_u32 m0, s35, {1024*(3*ip+u)}", rd=S(35), wr=["m0"]), dma(S_DV+u, 4, f"s{sw}", 0, "nt", mem=dep)]
            if n & 1: q.append(va("v_xor_b32", S_DV+u, "32", S_DV+u))
            if u == 2 and n < 3:
                q.append(sa(f"s_add_u32 s{sw}, s{sw}, {4*RS}", rd=S(sw), wr=S(sw)) if n != 1 else sa(f"s_sub_u32 s{sw}, s{sw}, {2*RS}", rd=S(sw), wr=S(sw)))
            g.append(q)
    return g
def s_pref():
    return [dsr(GLOC[f], 4, S_AW, 1024*(F_MS+f)) for f in range(18)]
def s_pv(tau, rho, d, g, soff, init=True):
    p = []
    b = S_SD+32*tau
    for kk in range(4): p.append(gp(nm(m32(d, S_VF+16*rho+4*kk, b+4*kk, d), f"PV{tau}{rho}"), g))
    for k in range(8): p.append(cvt(d+k, d+2*k, d+2*k+1))
    for k in range(4): p.append(swap16(d+k, d+4+k))
    p += [vms(d+4*q, 4, S_VO, 8, f"s{soff+q}", 64*rho) for q in range(2)]
    return p
def s_init(tau, rho, d):
    return [nm(m4(d+4*g, S_I4, S_XF+24*tau+8*rho+2*g), f"in{tau}{rho}") for g in range(4)]

def s_body(o):
    p = []
    XF, GF, VF, RK, WB = S_XF, S_GF, S_VF, S_RK, S_WB
    for tau in (1, 0):
        for s in range(6):
            p.append(dsr(XF+24*tau+4*s, 4, S_AE+(s & 1), 6144*tau+64*(s >> 1)))
    for k in range(2): p.append(va("v_add_u32", S_AE+k, "s34", S_AE+k))
    for rho in range(o.epre, 3): p += s_pv(0, rho, ETILE[rho], o.gE, 24)
    def cv16(dst, d, rev=False):
        for k in (range(7, -1, -1) if rev else range(8)): p.append(cvt(dst+k, d+2*k, d+2*k+1))
    dm = s_dmas(38, dep=V(XF, 48))
    cnt = [0]; M1, T1, L1, Q1, M0, T0, L0, Q0 = range(S_TM, S_TM+8)
    def mf(i, g, name):
        p.append(gp(nm(i, name), g)); cnt[0] += 1
        c = cnt[0]
        if c >= o.dma0 and (c - o.dma0) % o.dmastep == 0 and dm:
            q = dm.pop(0); q[0].after = i; p.extend(q)
        if c == o.flg:
            f = dsr(M1, 1, S_AW, FX); f.after = i; p.append(f)
        if c == o.chk:
            ch = check("L_Sc", M1, 22, wr=["M:ok"]); ch.after = i; p.append(ch)
            p.extend([dsr(Q0, 1, S_RQA, 0, mem=["M:ok"]), va("v_mov_b32", Q1, Q0), swap32(Q0, Q1)])
    for rho in range(3):
        d = VF+16*rho
        for s in range(6): mf(m32(d, GLOC[6*rho+s], XF+24+4*s, d if s else None), o.gA, f"G1{rho}")
        cv16(GF+8*rho, d)
    for k in range(8): p.append(dsr(RK+4*k, 4, S_RKA, 32*k, mem=["M:ok"]))
    def Sc(tau, g):
        for s in range(6):
            for kap in range(2):
                d = S_SD+32*tau+16*kap
                mf(m32(d, XF+24*kap+4*s, GF+4*s, d if s else None), g, f"S{tau}")
    Sc(1, o.gA)
    def softmax(tau):
        q = []
        b = S_SD+32*tau; mx, t2, l, rq = (M1, T1, L1, Q1) if tau else (M0, T0, L0, Q0)
        for k in range(32): q.append(va("v_mul_f32", b+k, b+k, RK+k))
        q += [va("v_max3_f32", mx, b, b+1, b+2), va("v_max3_f32", t2, b+3, b+4, b+5)]
        for k in range(6, 30, 4):
            q += [va("v_max3_f32", mx, mx, b+k, b+k+1), va("v_max3_f32", t2, t2, b+k+2, b+k+3)]
        q += [va("v_max3_f32", mx, mx, b+30, b+31), va("v_max_f32", mx, mx, t2), va("v_mov_b32", t2, mx), swap32(mx, t2),
              va("v_max_f32", mx, mx, t2), va("v_mul_f32", mx, f"-v{rq}", mx)]
        for k in range(32):
            q += [va("v_fma_f32", b+k, b+k, rq, mx), va("v_exp_f32", b+k, b+k)]
            if k == 1: q.append(va("v_add_f32", l, b, b+1))
            elif k == 3: q.append(va("v_add_f32", t2, b+2, b+3))
            elif k > 3: q.append(va("v_add_f32", l if k & 1 else t2, l if k & 1 else t2, b+k))
        q += [va("v_add_f32", l, l, t2), va("v_mov_b32", t2, l), swap32(l, t2), va("v_add_f32", l, l, t2), va("v_rcp_f32", l, l)]
        for k in range(32): q.append(va("v_mul_f32", b+k, b+k, RK+k))
        for k in range(0, 32, 2):
            q += [va("v_mul_f32", b+k, b+k, l), va("v_mul_f32", b+k+1, b+k+1, l), cvt(b+k//2, b+k, b+k+1)]
        return q
    p += softmax(1)
    wn = [0]
    def wread(f):
        r = WB + 4*(wn[0] % 5); wn[0] += 1
        p.append(dsr(r, 4, S_AW, 1024*f)); return r
    for rho in range(3):
        d = VF+16*rho
        for s in range(6):
            f = 6*rho+s
            w = GLOC[f] if f < 9 else wread(F_MS+f)
            mf(m32(d, w, XF+4*s, d if s else None), o.gC, f"G0{rho}")
        cv16(GF+8*rho, d)
    Sc(0, o.gC)
    p += softmax(0)
    def Vp(rho, d0, g):
        d2 = [d0, VF+16*rho]
        for s in range(6):
            w = wread(F_VS+6*rho+s)
            for kap in range(2): mf(m32(d2[kap], XF+24*kap+4*s, w, d2[kap] if s else None), g, f"V{rho}")
        cv16(VF+16*rho+8, d2[1], rev=True); cv16(VF+16*rho, d2[0])
    Vp(0, VF+32, o.gC)
    Vp(1, GF, o.gD)
    p += s_init(1, 0, SD1+16) + s_pv(1, 0, SD1+16, o.gD, 26)
    Vp(2, GF, o.gD)
    p += s_init(1, 1, SD1+16) + s_pv(1, 1, SD1+16, o.gD, 26)
    p += s_init(1, 2, GF) + s_pv(1, 2, GF, o.gD, 26)
    for rho in (2, 1, 0): p += s_init(0, rho, ETILE[rho])
    for rho in range(o.epre): p += s_pv(0, rho, ETILE[rho], o.gE, 20)
    pf = s_pref()
    p += pf
    p.append(sig(S_AW, FD, rd=["M:dma", "M:vms"]+[r for i in pf for r in i.wr if False], wr=["M:fd"], note="wait_dma"))
    assert not dm
    return p

def main_kernel(o):
    a = khead(KNAME)
    a += f"    s_cmp_ge_u32 s2, {NWG}\n    s_cbranch_scc1 L_end\n"
    a += "    s_load_dwordx2 s[42:43], s[0:1], 0\n    s_load_dwordx2 s[44:45], s[0:1], 40\n    s_load_dwordx2 s[46:47], s[0:1], 56\n"
    a += "    v_lshrrev_b32 v1, 6, v0\n    v_and_b32 v0, 63, v0\n    s_nop 0\n    v_readfirstlane_b32 s16, v1\n    s_waitcnt lgkmcnt(0)\n"
    a += emit(srd(4, 42, XB) + srd(8, 44, XB) + srd(12, 46, 73728))
    a += "    s_mov_b32 s48, 0\n    s_mov_b32 s49, s16\n" + emit(stamp(o))
    if o.prof: a += "    s_memrealtime s[44:45]\n    s_waitcnt lgkmcnt(0)\n    s_mov_b32 s98, s44\n"
    a += "    s_mov_b32 s17, 0\n    s_mov_b32 s18, s2\n    s_mov_b32 s34, 49152\n    s_cmp_ge_u32 s16, 4\n    s_cbranch_scc1 L_S\n"
    a += "    s_mov_b32 s97, 0\n"
    def i4(L, t0, t3, t4, dst):
        return [va("v_and_b32", t3, "1", L), va("v_lshlrev_b32", t3, "4", t3), va("v_mov_b32", t4, "0x3f80"), va("v_lshlrev_b32", t3, t3, t4),
          I(f"v_cmp_gt_u32 vcc, 2, v{t0}", "valu", rd=V(t0), wr=["vcc"]),
          I(f"v_cndmask_b32 v{dst}, 0, v{t3}, vcc", "valu", rd=V(t3)+["vcc"], wr=V(dst)),
          I(f"v_cndmask_b32 v{dst+1}, v{t3}, 0, vcc", "valu", rd=V(t3)+["vcc"], wr=V(dst+1))]
    p = []
    L = 0; t0, t1, t2, t3, t4 = 20, 21, 22, 23, 24
    p.append(va("v_lshlrev_b32", T_AW, "4", L))
    p += [sa("s_mul_i32 s19, s16, 6144", rd=S(16), wr=S(19)), sa(f"s_add_u32 s35, s19, {LW}", rd=S(19), wr=S(35)+["scc"]),
          sa("s_add_u32 s19, s19, 12288", rd=S(19), wr=S(19)+["scc"])]
    for k in range(6):
        p += [sa(f"s_add_u32 m0, s35, {1024*k}", rd=S(35), wr=["m0", "scc"]), dma(T_AW, 12, "s19", 0),
              sa("s_add_u32 s19, s19, 1024", rd=S(19), wr=S(19)+["scc"])]
    for k in range(12):
        p.append(sa(f"s_mov_b32 s19, {1024*k}", wr=S(19))); p.append(vml(T_MT+4*k, 4, T_AW, 12, "s19", 0))
    p.append(va("v_add_u32", T_AW, str(LW), T_AW))
    p += [va("v_mov_b32", t0, "1"), va("v_mov_b32", t1, "0"), dsw(T_AW, t0, 2, FD)]
    p += [sa("s_lshl_b32 s41, s16, 1", rd=S(16), wr=S(41)+["scc"]), sa("s_mul_i32 s35, s16, 3072", rd=S(16), wr=S(35)),
          va("v_and_b32", t0, "3", L), va("v_bfe_u32", t1, L, "2", "3"), va("v_lshrrev_b32", t2, "5", L),
          va("v_xor_b32", t3, t0, t2), va("v_xor_b32", t3, "s41", t3), va("v_and_b32", t3, "3", t3), va("v_lshlrev_b32", t3, "4", t3),
          va("v_mul_u32_u24", t4, "12288", t0), va("v_add_u32", t3, t3, t4), va("v_mul_u32_u24", t4, "192", t1),
          va("v_add3_u32", T_AX, t3, t4, "s35"), va("v_xor_b32", T_AX+1, "32", T_AX), va("v_xor_b32", T_AX+2, "16", T_AX),
          va("v_xor_b32", T_AX+3, "48", T_AX),
          va("v_mul_u32_u24", t3, "72", t0), va("v_lshl_add_u32", t3, t2, "3", t3), va("v_add_u32", t3, t3, t1),
          sa("s_lshl_b32 s19, s16, 6", rd=S(16), wr=S(19)+["scc"]), sa(f"s_add_u32 s19, s19, {LR}", rd=S(19), wr=S(19)+["scc"]),
          va("v_lshl_add_u32", T_AR, t3, "2", "s19")]
    p += i4(L, t0, t3, t4, T_I4) + [va("v_mov_b32", t4, "0x3f803f80")]
    m0 = sum(1 << (r+16*q) for r in range(8) for q in range(4) if (q & 1) == (r >> 2))
    for tau in range(2):
        m = m0 << (8*tau)
        p += [sa(f"s_mov_b32 s20, 0x{m & 0xffffffff:x}", wr=S(20)), sa(f"s_mov_b32 s21, 0x{m >> 32:x}", wr=S(21))]
        for k in range(4): p.append(cnd(T_SEL+4*tau+k, "0", t4, 20))
    for g in range(4):
        p += [sa(f"s_mov_b32 s{20+2*g}, 0x{0xF << (8*g):x}", wr=S(20+2*g)), sa(f"s_mov_b32 s{21+2*g}, 0x{0xF0 << (8*g):x}", wr=S(21+2*g))]
    for k in range(1, 4):
        m = 0x11111111 << k
        p += [sa(f"s_mov_b32 s{26+2*k}, 0x{m:x}", wr=S(26+2*k)), sa(f"s_mov_b32 s{27+2*k}, 0x{m:x}", wr=S(27+2*k))]
    a += emit(finalize(p))
    a += f"    s_mov_b32 s36, 2\n    s_waitcnt vmcnt(0) lgkmcnt(0)\n    s_barrier\n    s_setprio {o.prioT}\nL_Tloop:\n"
    a += emit(stamp(o) + stamp(o))
    seq, t = schedule(t_body(o), dslat=o.dslatT, verbose=True, window=3000, fixed=True, vlat=o.vlat)
    ctl = [I("s_sub_u32 s34, 0, s34", "salu"), I("s_add_u32 s36, s36, 1", "salu"), I("s_add_u32 s17, s17, 1", "salu"), I(f"s_cmp_lt_u32 s17, {NWIN}", "salu"), I("s_cbranch_scc1 L_Tloop", "salu")]
    fin = finalize(seq); fin = finalize(seq, history=fin[-24:] + ctl)
    if o.show: show(fin, "T")
    a += emit(fine(o, dynprio(fin, o.dynT), 8))
    a += emit(stamp(o) + stamp(o) + stamp(o)) + emit(ctl)
    a += emit(finalize(t_rout(), history=fin[-24:] + ctl))
    a += emit(stamp(o)) + prof_out(o) + "    s_endpgm\n" + slow("L_Tc", T_FL, T_AW, FD, 36)
    a += "L_S:\n    s_mov_b32 s97, 8\n    v_mov_b32 v19, v0\n"
    L = 19; t0, t1, t2, t3, t4 = 20, 21, 22, 23, 24
    p = [sa("s_sub_u32 s16, s16, 4", rd=S(16), wr=S(16)+["scc"])]
    p += win_off(38, 18, 19)
    p += [sa("s_mul_i32 s35, s16, 12288", rd=S(16), wr=S(35)), sa(f"s_mul_i32 s39, s16, {FS}", rd=S(16), wr=S(39))]
    for u in range(3):
        v = S_DV+u
        p += [va("v_add_u32", t0, str(64*u), L), I(f"v_cmp_le_u32 vcc, 96, v{t0}", "valu", rd=V(t0), wr=["vcc"]),
              I(f"v_cndmask_b32 v{t1}, 0, 1, vcc", "valu", rd=["vcc"], wr=V(t1)),
              va("v_mul_u32_u24", t2, "96", t1), va("v_sub_u32", t0, t0, t2),
              va("v_mul_u32_u24", t2, "43", t0), va("v_lshrrev_b32", t2, "9", t2),
              va("v_mul_u32_u24", t3, "12", t2), va("v_sub_u32", t3, t0, t3),
              va("v_xor_b32", t4, t3, t1), va("v_xor_b32", t4, "s16", t4), va("v_and_b32", t4, "3", t4),
              va("v_and_b32", t3, "12", t3), va("v_or_b32", t3, t3, t4),
              va("v_mul_u32_u24", t2, "12", t2), va("v_add_u32", t3, t3, t2), va("v_lshlrev_b32", t3, "4", t3),
              va("v_mul_u32_u24", t1, str(RS), t1), va("v_add3_u32", v, t3, t1, "s39")]
    p += [i for g in s_dmas(38) for i in g]
    p += [va("v_lshlrev_b32", S_AW, "4", L),
          sa("s_mul_i32 s19, s16, 9216", rd=S(16), wr=S(19)), sa(f"s_add_u32 s36, s19, {LW+24576}", rd=S(19), wr=S(36)+["scc"]),
          sa(f"s_add_u32 s19, s19, {12288+24576}", rd=S(19), wr=S(19)+["scc"])]
    for k in range(9):
        p += [sa(f"s_add_u32 m0, s36, {1024*k}", rd=S(36), wr=["m0", "scc"]), dma(S_AW, 12, "s19", 0),
              sa("s_add_u32 s19, s19, 1024", rd=S(19), wr=S(19)+["scc"])]
    p += [sa(f"s_add_u32 s36, s18, {NWG}", rd=S(18), wr=S(36)+["scc"])] + win_off(38, 36, 19)
    p += [sa("s_add_u32 s35, s35, s34", rd=S(35)+S(34), wr=S(35)+["scc"])]
    p += [i for g in s_dmas(38) for i in g]
    p += [sa("s_sub_u32 s35, s35, s34", rd=S(35)+S(34), wr=S(35)+["scc"])]
    p += [va("v_add_u32", S_AW, str(LW), S_AW),
          va("v_and_b32", t0, "7", L), va("v_bfe_u32", t1, L, "3", "2"), va("v_lshrrev_b32", t2, "5", L),
          va("v_mul_u32_u24", t3, "192", t0), va("v_and_b32", t4, "1", t1), va("v_mul_u32_u24", t4, str(RS), t4), va("v_add3_u32", S_VO, t3, t4, "s39"),
          va("v_lshl_add_u32", S_VO, t2, "4", S_VO), va("v_lshrrev_b32", t4, "1", t1), va("v_lshl_add_u32", S_VO, t4, "5", S_VO),
          sa("s_mul_i32 s19, s16, 288", rd=S(16), wr=S(19)), sa(f"s_add_u32 s19, s19, {LR}", rd=S(19), wr=S(19)+["scc"]),
          va("v_lshl_add_u32", S_RKA, t2, "4", "s19"), va("v_lshl_add_u32", S_RQA, L, "2", "s19"),
          va("v_xor_b32", t2, t2, t1), va("v_xor_b32", t2, "s16", t2), va("v_and_b32", t2, "3", t2), va("v_lshl_add_u32", t3, t2, "4", t3),
          va("v_mul_u32_u24", t4, "1536", t1),
          va("v_add3_u32", S_AE, t3, t4, "s35"), va("v_xor_b32", S_AE+1, "32", S_AE),
          va("v_and_b32", t0, "3", L)] + i4(L, t0, t3, t4, S_I4) + [
          sa("s_mov_b32 s43, 2", wr=S(43)), sa("s_mov_b32 s22, 3", wr=S(22)), sa("s_mov_b32 s24, 0x7000000", wr=S(24)), sa("s_mov_b32 s25, 0x7000000", wr=S(25))]
    a += emit(finalize(p))
    a += f"    s_waitcnt vmcnt(12)\n    s_barrier\n    s_setprio {o.prioS}\n" + emit(s_pref()) + "    s_waitcnt vmcnt(0)\n" + emit([sig(S_AW, FD)]) + "L_Sloop:\n"
    p = win_off(20, 18, 19) + [sa(f"s_add_u32 s21, s20, {2*RS}"), sa(f"s_add_u32 s26, s20, {4*RS}"), sa(f"s_add_u32 s27, s20, {6*RS}"),
         sa(f"s_add_u32 s18, s18, {NWG}", rd=S(18), wr=S(18)+["scc"]), sa(f"s_add_u32 s41, s18, {NWG}", rd=S(18), wr=S(41)+["scc"])]
    p += win_off(38, 41, 19)
    p += [sa(f"s_cmp_ge_u32 s17, {NWIN-2}", rd=S(17), wr=["scc"]), sa("s_cselect_b32 s38, 0x7000000, s38", rd=S(38)+["scc"], wr=S(38))]
    a += emit(stamp(o)) + emit(p) + poll("L_Sp", S_TM, S_AW, FX, 43) + emit(stamp(o))
    seq, t = schedule(s_body(o), dslat=o.dslat, verbose=True, window=3000, fixed=True, vlat=o.vlat)
    fin = finalize(seq)
    if o.show: show(fin, "S")
    a += emit(fine(o, dynprio(fin, o.dynS), 12))
    a += emit(stamp(o) + stamp(o) + stamp(o))
    ctl = [I(x, "salu") for x in ("s_add_u32 s35, s35, s34", "s_sub_u32 s34, 0, s34", "s_add_u32 s43, s43, 2", "s_add_u32 s22, s22, 2", "s_mov_b64 s[24:25], s[20:21]",
           "s_add_u32 s17, s17, 1", f"s_cmp_lt_u32 s17, {NWIN}", "s_cbranch_scc1 L_Sloop")]
    a += emit(ctl)
    tail = []
    for rho in range(o.epre, 3): tail += s_pv(0, rho, ETILE[rho], 32, 24)
    if tail:
        seq, t = schedule(tail, fixed=True)
        a += emit(finalize(seq, history=fin[-24:] + ctl))
    a += emit(stamp(o)) + prof_out(o)
    a += "L_end:\n    s_endpgm\n" + slow("L_Sc", S_TM, S_AW, FX, 22)
    return a

def build(o):
    h = f"; @launch kernel=prep_kernel grid=(12,1,1) block=(64,1,1) lds=0\n; @launch kernel={KNAME} grid=({NWG},1,1) block=(512,1,1) lds={LDSZ}\n"
    h += '.amdgcn_target "amdgcn-amd-amdhsa--gfx950"\n'
    return h + prep_kernel() + main_kernel(o) + kd("prep_kernel") + kd(KNAME)

if __name__ == "__main__":
    out = sys.argv[1]
    kw = {}
    for x in sys.argv[2:]:
        k, v = x.split("="); kw[k] = eval(v)
    open(out, "w").write(build(Opt(**kw)))
```

```python
import sys
sys.path.insert(0, "work")
from asmlib import *
import gen as G2
from gen import FS, RS, XB, NWG, NWIN, LW, LR, LF, LDSZ, FD, FX, F_MT2, F_VT, F_MS, F_VS, KNAME, SCALE, fbits, stamp, prof_out, fine, dynprio, srd, kd, khead, win_off, poll, signal, cnd

class Opt:
    dslat = 200; dslatT = 160
    gA = 32; gC = 44; gD = 44; gE = 32
    epre = 0
    prioT = 0; prioS = 1
    prof = False
    dynT = None; dynS = None
    dma0 = 14; dmastep = 2
    flgT = 7; chkT = 12
    pf = 0
    prioJ = (2, 0)
    flg = 6; chk = 11
    show = False
    vlat = 8
    stf = ""
    dvearly = 1; searly = 1
    def __init__(s, **k):
        for a, b in k.items():
            assert hasattr(s, a), a
            setattr(s, a, b)

def check(lbl, tmp, starget, rd=(), wr=()):
    return I(f"v_cmp_le_u32 vcc, s{starget}, v{tmp}\n    s_nop 0\n    s_and_b32 s41, vcc_lo, 15\n    s_cmp_lg_u32 s41, 15\n    s_cbranch_scc1 {lbl}_slow\n{lbl}_back:", "chk", rd=V(tmp)+list(rd), wr=list(wr)+S(19)+S(41)+["scc", "vcc"])
def slow(lbl, tmp, aw, off, starget):
    return f"""{lbl}_slow:
    s_mov_b32 s19, 0x100000
{lbl}_sl:
    ds_read_b32 v{tmp}, v{aw} offset:{off}
    s_waitcnt lgkmcnt(0)
    s_sub_u32 s19, s19, 1
    s_cbranch_scc1 {lbl}_back
    v_cmp_le_u32 vcc, s{starget}, v{tmp}
    s_nop 0
    s_and_b32 s41, vcc_lo, 15
    s_cmp_lg_u32 s41, 15
    s_cbranch_scc1 {lbl}_sl
    s_branch {lbl}_back
"""
def sig(aw, off, rd=(), wr=(), note=""):
    i = I(f"s_lshl_b64 exec, 1, s16\n    ds_inc_u32 v{aw}, v{aw} offset:{off}\n    s_mov_b64 exec, -1", "dsw", rd=V(aw)+list(rd), wr=list(wr))
    i.note = note
    return i
def swap16(a, b):
    return I(f"v_permlane16_swap_b32 v{a}, v{b}", "perm", rd=V(a)+V(b), wr=V(a)+V(b), dpp=V(a)+V(b))
def gp(i, g):
    i.gap = g; return i
def show(seq, title):
    print("---", title)
    nv = 0; no = 0; line = []
    for i in seq:
        if is_mf(i):
            line.append(f"{i.note or i.kind}@{i.cnt}[{nv},{no}]"); nv = 0; no = 0
        elif is_valu(i): nv += 2 if i.kind in ("trans", "perm") else 1
        else: no += i.cnt if i.kind == "nop" else 1
    line.append(f"end[{nv},{no}]")
    for k in range(0, len(line), 8): print(" ".join(line[k:k+8]))

T_R, T_AX, T_AW, T_AR, T_DV, T_I4, T_SEL, T_TMP = 0, 1, 5, 6, 7, 10, 12, 20
T_XF, T_VB, T_MT, T_D, T_WB, T_PF = 32, 80, 128, 176, 224, 240
SM, GA = T_TMP, T_TMP+4
T_FL, T_R2 = T_PF+8, GA+1
def nm(i, s):
    i.note = s; return i
def t_stat_mf(chunks, first):
    a = []; b = []
    for tau, s in chunks:
        x = T_XF+24*tau+4*s
        a.append(nm(m16(SM, T_SEL+4*tau, x, None if "s" in first else SM), "st16")); first.discard("s")
        for q in range(2):
            b.append(nm(m4(GA+4*tau, x+2*q, x+2*q, None if tau in first else GA+4*tau), "st4")); first.discard(tau)
    p = []
    for k in range(len(a)): p += [b[2*k], a[k], b[2*k+1]]
    return p
def t_chain(rdst):
    p = []
    for tau in range(2):
        g = GA+4*tau
        for k in range(1, 4): p.append(cnd(g, g, g+k, 28+2*(k-1)))
    p += [va("v_mul_f32", SM, fbits(1/96), SM), va("v_mul_f32", SM, SM, SM), va("v_mov_b32", SM+1, fbits(1/96)),
          swap32(GA, GA+4), va("v_add_f32", GA, GA, GA+4), va("v_fma_f32", GA, GA, SM+1, f"-v{SM}"),
          va("v_max_f32", GA, "0", GA), va("v_add_f32", GA, fbits(1e-5), GA), va("v_rsq_f32", rdst, GA)]
    return p
def t_rout():
    return t_chain(T_R2) + [dsw(T_AR, T_R2, 1, 0, mem=["M:r"]), sig(T_AW, FX, rd=["M:r"], wr=["M:fx"]), va("v_add_u32", T_AR, "s40", T_AR)]
def t_dmas(dep=()):
    g = []
    for n, t in enumerate((0, 1, 3, 2)):
        for u in range(3):
            q = [sa(f"s_add_u32 m0, s35, {12288*t+1024*u}", rd=S(35), wr=["m0"]), dma(T_DV+u, 4, "s38", 0, "nt", mem=dep),
                 va("v_xor_b32", T_DV+u, "32" if n & 1 else "16", T_DV+u)]
            if u == 2 and n < 3:
                q.append(sa(("s_add_u32 s38, s38, %d" % FS, "s_add_u32 s38, s38, %d" % (2*FS), "s_sub_u32 s38, s38, %d" % FS)[n], rd=S(38), wr=S(38)))
            g.append(q)
    return g
def t_nextwin():
    return win_off(38, 18, 19) + [sa("s_add_u32 s38, s38, s37", rd=S(38)+S(37), wr=S(38)+["scc"])]
def t_adv():
    return [sa(f"s_add_u32 s18, s18, {NWG}", rd=S(18), wr=S(18)+["scc"])] + t_nextwin() + [
            sa(f"s_cmp_ge_u32 s17, {NWIN-1}\n    s_cselect_b32 s38, 0x7000000, s38", rd=S(17)+S(38), wr=S(38)+["scc"])]

def t_body(o):
    p = []
    XF, VB, WB, PF, R = T_XF, T_VB, T_WB, T_PF, T_R
    A, B, C = T_D, T_D+16, T_D+32
    xa = lambda tau, s: (T_AX + 2*tau + (s & 1), 1536*tau + 64*(s >> 1))
    for tau in range(2):
        for s in range(6):
            a, off = xa(tau, s); p.append(dsr(XF+24*tau+4*s, 4, a, off))
    p += t_adv()
    p += t_rout()
    wb = [0]
    def wread(f):
        r = WB + 4*(wb[0] % 4); wb[0] += 1
        p.append(dsr(r, 4, T_AW, 1024*f)); return r
    def cv16(dst, d, rev=False):
        for k in (range(7, -1, -1) if rev else range(8)): p.append(cvt(dst+k, d+2*k, d+2*k+1))
    SS = PF
    def smf(rho):
        for s in (2*rho, 2*rho+1):
            for q in range(2):
                for tau in range(2):
                    p.append(nm(m4(SS+4*tau, XF+24*tau+4*s+2*q, VB+16*rho+8*tau+4*(s & 1)+2*q, SS+4*tau if (s or q) else None), f"smf{rho}"))
    def Gm(d, rho, tau):
        for s in range(6): p.append(nm(m32(d, T_MT+24*rho+4*s, XF+24*tau+4*s, d if s else None), f"G{rho}{tau}"))
        cv16(VB+16*rho+8*tau, d)
    Gm(A, 0, 0); Gm(B, 0, 1)
    p += t_stat_mf([(tau, s) for s in range(6) for tau in range(2)], {"s", 0, 1})
    p += t_chain(R)
    Gm(C, 1, 0); smf(0); Gm(A, 1, 1)
    for s in range(6):
        w = wread(F_MT2+s)
        for tau in range(2): p.append(nm(m32((B, C)[tau], w, XF+24*tau+4*s, (B, C)[tau] if s else None), f"G2{tau}"))
        if s == 2: smf(1)
    for tau in range(2): cv16(VB+32+8*tau, (B, C)[tau])
    t = T_TMP; mx = T_TMP+4; l = T_TMP+5; pa = T_TMP+6
    def softmax():
        for i in range(4):
            p.extend([swap32(SS+i, SS+4+i), va("v_add_f32", SS+i, SS+i, SS+4+i), dpp("v_mul_f32", t+i, R, SS+i, f"quad_perm:[{i},{i},{i},{i}]")])
        p.extend([va("v_max3_f32", mx, t, t+1, t+2), va("v_max_f32", mx, mx, t+3), va("v_mul_f32", mx, f"-v{R}", mx)])
        for i in range(4): p.extend([va("v_fma_f32", t+i, t+i, R, mx), va("v_exp_f32", t+i, t+i)])
        p.extend([va("v_add_f32", l, t, t+1), va("v_add_f32", mx, t+2, t+3), va("v_add_f32", l, l, mx), va("v_rcp_f32", l, l)])
        for i in range(4): p.extend([dpp("v_mul_f32", t+i, R, t+i, f"quad_perm:[{i},{i},{i},{i}]"), va("v_mul_f32", t+i, t+i, l)])
        p.extend([cvt(pa, t, t+1), cvt(pa+1, t+2, t+3), va("v_mov_b32", pa+2, pa), va("v_mov_b32", pa+3, pa+1),
                  swap32(pa, pa+2), swap32(pa+1, pa+3)])
        for tau in range(2):
            for g in range(4):
                for q in range(2): p.append(cnd(PF+8*tau+2*g+q, "0", pa+2*tau+q, 20+2*g))
    flg = None
    for rho in range(3):
        d2 = [(A, B, C)[rho], VB+16*rho]
        for s in range(6):
            w = wread(F_VT+6*rho+s)
            for tau in range(2): p.append(nm(m32(d2[tau], XF+24*tau+4*s, w, d2[tau] if s else None), f"V{rho}{tau}"))
            if rho == 0 and s == 1: smf(2); softmax()
        cv16(VB+16*rho+8, d2[1], rev=True); cv16(VB+16*rho, d2[0])
    tiles = [(0, 0, A), (0, 1, B), (1, 0, WB), (1, 1, C), (2, 0, A), (2, 1, B)]
    def init(k):
        rho, tau, d = tiles[k]
        for g in range(4): p.append(nm(m4(d+4*g, T_I4, XF+24*tau+8*rho+2*g), f"in{k}"))
    def pv(k):
        rho, tau, d = tiles[k]
        for s2 in range(2): p.append(nm(m32(d, VB+16*rho+8*tau+4*s2, PF+8*tau+4*s2, d), f"PV{k}"))
        cv16(XF+24*tau+8*rho, d)
        for s in (2*rho, 2*rho+1):
            a, off = xa(tau, s); p.append(dsw(a, XF+24*tau+4*s, 4, off, mem=[f"M:x{k}{s}"]))
    first = {"s", 0, 1}
    def st(k):
        rho, tau, d = tiles[k]
        p.extend(t_stat_mf([(tau, 2*rho), (tau, 2*rho+1)], first))
    init(0); init(1); pv(0); init(2); pv(1); init(3); pv(2); st(0); pv(3); init(4); st(1); pv(4); init(5); st(2); pv(5); st(3); st(4)
    p.append(sig(T_AW, FX, rd=[f"M:x{k}{2*tiles[k][0]+q}" for k in range(6) for q in range(2)], wr=["M:fx"]))
    st(5)
    for k in range(4): p.append(va("v_add_u32", T_AX+k, "s34", T_AX+k))
    q = []; c = 0; dm = t_dmas(dep=["M:ok"])
    for i in p:
        q.append(i)
        if i.kind != "m32": continue
        c += 1
        if c == o.flgT:
            f = dsr(T_FL, 1, T_AW, FD); f.after = i; q.append(f)
        if c == o.chkT:
            ch = check("L_Tc", T_FL, 36, wr=["M:ok"]); ch.after = i; q.append(ch)
        if c >= o.dma0 and (c - o.dma0) % o.dmastep == 0 and dm:
            g = dm.pop(0); g[0].after = i; q.extend(g)
    assert not dm and o.flgT < o.chkT <= o.dma0
    return q

S_AE, S_AW, S_RKA, S_VO, S_I4, S_TM, S_RQA = 0, 2, 3, 4, 8, 10, 18
S_XF, S_GF, S_VF, S_SD, S_RK, S_WB = 20, 68, 92, 140, 204, 236
SD0, SD1 = S_SD, S_SD+32
GLOC = [S_WB+4*k for k in range(5)] + [SD0+16+4*k for k in range(4)] + [S_RK+4*k for k in range(8)] + [S_GF+16]
ETILE = [S_GF, SD1+16, SD1]
STF = [""]
def s_pref():
    return [dsr(GLOC[f], 4, S_AW, 1024*(F_MS+f)) for f in range(18)]
def s_pv(tau, rho, d, g, soff, init=True):
    p = []
    b = S_SD+32*tau
    for kk in range(4): p.append(gp(nm(m32(d, S_VF+16*rho+4*kk, b+4*kk, d), f"PV{tau}{rho}"), g))
    for k in range(8): p.append(cvt(d+k, d+2*k, d+2*k+1))
    for k in range(4): p.append(swap16(d+k, d+4+k))
    p += [vms(d+4*q, 4, S_VO, 8, f"s{soff+q}", 64*rho, STF[0]) for q in range(2)]
    return p
def s_init(tau, rho, d):
    return [nm(m4(d+4*g, S_I4, S_XF+24*tau+8*rho+2*g), f"in{tau}{rho}") for g in range(4)]

def s_body(o):
    p = []
    XF, GF, VF, RK, WB = S_XF, S_GF, S_VF, S_RK, S_WB
    for tau in (1, 0):
        for s in range(6):
            p.append(dsr(XF+24*tau+4*s, 4, S_AE+(s & 1), 6144*tau+64*(s >> 1)))
    for k in range(2): p.append(va("v_add_u32", S_AE+k, "s34", S_AE+k))
    p.append(sig(S_AW, FD, rd=V(XF, 48), wr=["M:fd"]))
    for rho in range(o.epre, 3): p += s_pv(0, rho, ETILE[rho], o.gE, 24)
    def cv16(dst, d, rev=False):
        for k in (range(7, -1, -1) if rev else range(8)): p.append(cvt(dst+k, d+2*k, d+2*k+1))
    cnt = [0]; M1, T1, L1, Q1, M0, T0, L0, Q0 = range(S_TM, S_TM+8)
    def mf(i, g, name):
        p.append(gp(nm(i, name), g)); cnt[0] += 1
        c = cnt[0]
        if c == o.flg:
            f = dsr(M1, 1, S_AW, FX); f.after = i; p.append(f)
        if c == o.chk:
            ch = check("L_Sc", M1, 22, wr=["M:ok"]); ch.after = i; p.append(ch)
            p.extend([dsr(Q0, 1, S_RQA, 0, mem=["M:ok"]), va("v_mov_b32", Q1, Q0), swap32(Q0, Q1), va("v_add_u32", S_RQA, "s40", S_RQA)])
    for rho in range(3):
        d = VF+16*rho
        for s in range(6): mf(m32(d, GLOC[6*rho+s], XF+24+4*s, d if s else None), o.gA, f"G1{rho}")
        cv16(GF+8*rho, d)
    for k in range(8): p.append(dsr(RK+4*k, 4, S_RKA, 32*k, mem=["M:ok"]))
    p.append(va("v_add_u32", S_RKA, "s40", S_RKA))
    def Sc(tau, g):
        for s in range(6):
            for kap in range(2):
                d = S_SD+32*tau+16*kap
                mf(m32(d, XF+24*kap+4*s, GF+4*s, d if s else None), g, f"S{tau}")
    Sc(1, o.gA)
    def softmax(tau):
        q = []
        b = S_SD+32*tau; mx, t2, l, rq = (M1, T1, L1, Q1) if tau else (M0, T0, L0, Q0)
        for k in range(32): q.append(va("v_mul_f32", b+k, b+k, RK+k))
        q += [va("v_max3_f32", mx, b, b+1, b+2), va("v_max3_f32", t2, b+3, b+4, b+5)]
        for k in range(6, 30, 4):
            q += [va("v_max3_f32", mx, mx, b+k, b+k+1), va("v_max3_f32", t2, t2, b+k+2, b+k+3)]
        q += [va("v_max3_f32", mx, mx, b+30, b+31), va("v_max_f32", mx, mx, t2), va("v_mov_b32", t2, mx), swap32(mx, t2),
              va("v_max_f32", mx, mx, t2), va("v_mul_f32", mx, f"-v{rq}", mx)]
        for k in range(32):
            q += [va("v_fma_f32", b+k, b+k, rq, mx), va("v_exp_f32", b+k, b+k)]
            if k == 1: q.append(va("v_add_f32", l, b, b+1))
            elif k == 3: q.append(va("v_add_f32", t2, b+2, b+3))
            elif k > 3: q.append(va("v_add_f32", l if k & 1 else t2, l if k & 1 else t2, b+k))
        q += [va("v_add_f32", l, l, t2), va("v_mov_b32", t2, l), swap32(l, t2), va("v_add_f32", l, l, t2), va("v_rcp_f32", l, l)]
        for k in range(32): q.append(va("v_mul_f32", b+k, b+k, RK+k))
        for k in range(0, 32, 2):
            q += [va("v_mul_f32", b+k, b+k, l), va("v_mul_f32", b+k+1, b+k+1, l), cvt(b+k//2, b+k, b+k+1)]
        return q
    p += softmax(1)
    wn = [0]
    def wread(f):
        r = WB + 4*(wn[0] % 5); wn[0] += 1
        p.append(dsr(r, 4, S_AW, 1024*f)); return r
    for rho in range(3):
        d = VF+16*rho
        for s in range(6):
            f = 6*rho+s
            w = GLOC[f] if f < 9 else wread(F_MS+f)
            mf(m32(d, w, XF+4*s, d if s else None), o.gC, f"G0{rho}")
        cv16(GF+8*rho, d)
    Sc(0, o.gC)
    p += softmax(0)
    def Vp(rho, d0, g):
        d2 = [d0, VF+16*rho]
        for s in range(6):
            w = wread(F_VS+6*rho+s)
            for kap in range(2): mf(m32(d2[kap], XF+24*kap+4*s, w, d2[kap] if s else None), g, f"V{rho}")
        cv16(VF+16*rho+8, d2[1], rev=True); cv16(VF+16*rho, d2[0])
    Vp(0, VF+32, o.gC)
    Vp(1, GF, o.gD)
    p += s_init(1, 0, SD1+16) + s_pv(1, 0, SD1+16, o.gD, 26)
    Vp(2, GF, o.gD)
    p += s_init(1, 1, SD1+16) + s_pv(1, 1, SD1+16, o.gD, 26)
    p += s_init(1, 2, GF) + s_pv(1, 2, GF, o.gD, 26)
    for rho in (2, 1, 0): p += s_init(0, rho, ETILE[rho])
    for rho in range(o.epre): p += s_pv(0, rho, ETILE[rho], o.gE, 20)
    pf = s_pref()
    p += pf
    return p

J_A, J_O, J_D, J_F = 1, 2, 3, 4
J_WK, J_WQ, J_DD, J_DC = 16, 88, 160, 208
J_IF, J_ONE, J_AT = 208, 216, 220
def j_consts():
    p = []; vL = 0
    t0, t1, t2, t3, t4 = 10, 11, 12, 13, 14
    p += [va("v_and_b32", t0, "0x13", vL), va("v_and_b32", t1, "4", vL), va("v_and_b32", t2, "8", vL),
          va("v_lshl_or_b32", t0, t1, "1", t0), va("v_lshrrev_b32", t2, "1", t2), va("v_or_b32", t0, t0, t2),
          va("v_lshrrev_b32", t3, "5", vL), va("v_lshlrev_b32", t4, "4", t3),
          va("v_mul_u32_u24", J_A, "576", t0), va("v_add_u32", J_A, J_A, t4),
          va("v_mul_u32_u24", J_O, "192", t0), va("v_add_u32", J_O, J_O, t4)]
    return p
def j_consts2():
    p = []; vL = 0
    t0, t1, t2, t3, t4 = 10, 11, 12, 13, 14
    p += [va("v_lshrrev_b32", t3, "5", vL),
          va("v_bfe_u32", t0, vL, "3", "2"), va("v_bfe_u32", t1, vL, "1", "1"), va("v_lshl_or_b32", t0, t0, "1", t1),
          va("v_bfe_u32", t1, vL, "2", "1"),
          I(f"v_cmp_eq_u32 vcc, v{t1}, v{t3}", "valu", rd=V(t1)+V(t3), wr=["vcc"]),
          va("v_mov_b32", t2, "99"),
          I(f"v_cndmask_b32 v{t0}, v{t2}, v{t0}, vcc", "valu", rd=V(t2)+V(t0)+["vcc"], wr=V(t0)),
          va("v_and_b32", t1, "1", vL), va("v_lshlrev_b32", t1, "4", t1), va("v_mov_b32", t2, "0x3f80"),
          va("v_lshlrev_b32", t1, t1, t2)]
    for k in range(8):
        p += [I(f"v_cmp_eq_u32 vcc, {k}, v{t0}", "valu", rd=V(t0), wr=["vcc"]),
              I(f"v_cndmask_b32 v{J_IF+k}, 0, v{t1}, vcc", "valu", rd=V(t1)+["vcc"], wr=V(J_IF+k))]
    for k in range(4): p.append(va("v_mov_b32", J_ONE+k, "0x3f803f80"))
    for k in range(12):
        if k & 3: p.append(va("v_mov_b32", J_AT+k, "0"))
    p += [va("v_lshlrev_b32", J_D, "4", vL), va("v_add_u32", J_D, "s67", J_D), va("v_mov_b32", J_F, str(LF))]
    return p
def j_loadM():
    p = []
    for u in range(3):
        for s in range(6): p.append(vml(J_WK+24*u+4*s, 4, J_A, 24, f"s{63+u}", 192+32*s))
    for a in range(3):
        for s in range(6): p.append(vml(J_WQ+24*a+4*s, 4, J_A, 24, f"s{60+a}", 32*s))
    return p
def j_loadO(r):
    return [vml(J_WK+24*r+8*d+4*s, 4, J_O, 28, f"s{63+d}", 64*r+32*s) for d in range(3) for s in range(2)]
def j_loadV():
    return [vml(J_WQ+24*a+4*s, 4, J_A, 24, f"s{60+a}", 384+32*s) for a in range(3) for s in range(6)]
def runsum(regs, acc):
    n = len(acc); p = []
    for k in range(n): p.append(va("v_add_f32", acc[k], regs[k], regs[n+k]))
    for k in range(2*n, len(regs)): p.append(va("v_add_f32", acc[k % n], acc[k % n], regs[k]))
    while n > 1:
        n //= 2
        for k in range(n): p.append(va("v_add_f32", acc[k], acc[k], acc[k+n]))
    return p
def j_epi(scale):
    D = J_DD
    p = runsum(list(range(D, D+48)), [10, 11, 12, 13])
    p += [va("v_mov_b32", 11, 10), swap32(10, 11), va("v_add_f32", 10, 10, 11),
          va("v_mul_f32", 10, fbits(-scale/96), 10), va("v_mov_b32", 12, fbits(scale))]
    for a in range(3):
        for k in range(16): p.append(va("v_fma_f32", D+16*a+k, D+16*a+k, 12, 10))
        for k in range(8): p.append(cvt(D+16*a+k, D+16*a+2*k, D+16*a+2*k+1))
        for s in range(2): p.append(dsw(J_D, D+16*a+4*s, 4, 1024*(2*a+s)))
    return p
def j_Mpre():
    p = []; D = J_DD
    for d in range(3):
        n = 0
        for u in range(3):
            for s in range(2):
                p.append(m32(D+16*d, J_WK+24*u+4*(2*d+s), J_IF+4*s, D+16*d if n else None)); n += 1
    for d in range(3):
        p += G2.tree_sum(list(range(D+16*d, D+16*d+16)), 10+d)
        p += [va("v_mul_f32", 10+d, fbits(-1/96), 10+d), va("v_cvt_pk_bf16_f32", J_AT+4*d, 10+d, "0")]
    for d in range(3):
        p.append(m32(D+16*d, J_AT+4*d, J_ONE))
        for k in range(8): p.append(cvt(D+16*d+k, D+16*d+2*k, D+16*d+2*k+1))
    for a in (0, 2, 1):
        for s in range(6): p.append(m32(J_DC+16*a, J_WQ+24*a+4*s, D+16*(s >> 1)+4*(s & 1), J_DC+16*a if s else None))
    return p
def j_Mloop():
    p = []; D = J_DD
    for a in range(3):
        for s in range(6): p.append(m32(D+16*a, J_WQ+24*a+4*s, J_WK+4*s, D+16*a if s else J_DC+16*a))
    return p + j_epi(SCALE)
def j_Vloop():
    p = []; D = J_DD; B2 = 216
    for d in range(3):
        for s in range(2): p.append(m32(D+16*d, J_WK+8*d+4*s, J_IF+4*s, D+16*d if s else None))
        for k in range(8): p.append(cvt(B2+8*d+k, D+16*d+2*k, D+16*d+2*k+1))
    for a in range(3):
        for s in range(6): p.append(m32(D+16*a, J_WQ+24*a+4*s, B2+4*s, D+16*a if s else None))
    return p + j_epi(1.0)
def j_shift():
    return [va("v_mov_b32", J_WK+k, J_WK+24+k) for k in range(48)] + [va("v_add_u32", J_D, "6144", J_D)]
def poll1(lbl, off, n, tmp=10):
    return f"""    s_mov_b32 s19, 0x100000
{lbl}:
    ds_read_b32 v{tmp}, v{J_F} offset:{off}
    s_sub_u32 s19, s19, 1
    s_cbranch_scc1 {lbl}_x
    s_waitcnt lgkmcnt(0)
    v_cmp_le_u32 vcc, {n}, v{tmp}
    s_nop 0
    s_cbranch_vccz {lbl}
{lbl}_x:
"""
def fake_vm(n):
    l = []
    for k in range(n):
        i = I("", "dma"); l.append(i)
    return l
def fin_after(loads, extra, body, sched=True, **kw):
    if sched: body, t = schedule(body, verbose=True, **kw)
    f = finalize(loads + fake_vm(extra) + body)
    k = max(f.index(i) for i in loads) + extra + 1
    return f[k:]

RAW0, RAW2, RAWO = 61440, 122880, 141312
def j_raw_addr():
    p = [va("v_lshrrev_b32", 10, "2", 0), va("v_add_u32", 10, "s61", 10), va("v_mul_u32_u24", 10, "s60", 10),
         va("v_lshlrev_b32", 11, "4", 0), sa("s_lshl_b32 s60, s60, 4", rd=S(60), wr=S(60)+["scc"])]
    for k in range(9):
        p += [va("v_lshrrev_b32", 12, "12", 10), va("v_and_b32", 12, "48", 12), va("v_xor_b32", 16+k, 12, 11)]
        if k < 8: p.append(va("v_add_u32", 10, "s60", 10))
    return p
def j_raw_dma():
    p = []
    for k in range(9):
        if k % 4 == 0:
            if k: p += [sa("s_add_u32 s62, s62, 4096", rd=S(62), wr=S(62)+["scc"])]
            p += [sa(f"s_add_u32 m0, s63, {4096*(k//4)}", rd=S(63), wr=["m0", "scc"])]
        p.append(dma(16+k, 68, "s62", 1024*(k % 4)))
    return p
def j_lds_addr():
    t0, t1, t2, t3 = 10, 11, 12, 13
    return [va("v_lshrrev_b32", t3, "5", 0), va("v_bfe_u32", t0, 0, "3", "1"), va("v_bfe_u32", t1, 0, "2", "1"), va("v_lshl_or_b32", t0, t1, "1", t0),
            va("v_xor_b32", t0, t0, t3), va("v_sub_u32", t0, t0, t3), va("v_lshlrev_b32", t0, "4", t0),
            va("v_add_u32", t1, J_A, t0), va("v_add_u32", 5, str(RAW0), t1), va("v_xor_b32", 6, "32", 5),
            va("v_add_u32", t1, J_O, t0), va("v_add_u32", 14, str(RAWO), t1)]
TOFF = (0, 18432, RAW2 - RAW0)
def j_readM():
    p = []
    for u in range(3): p += [va("v_add_u32", 10+2*u, f"s{63+u}", 5), va("v_add_u32", 11+2*u, f"s{63+u}", 6)]
    for u in range(3):
        for s in range(6): p.append(dsr(J_WK+24*u+4*s, 4, 10+2*u+(s & 1), 192+64*(s >> 1)))
    for a in range(3):
        for s in range(6): p.append(dsr(J_WQ+24*a+4*s, 4, 5+(s & 1), TOFF[a]+64*(s >> 1)))
    return p
def j_readV():
    p = [sa("s_lshl_b32 s19, s32, 6", rd=S(32), wr=S(19)+["scc"]), va("v_add_u32", 14, "s19", 14), va("v_xor_b32", 15, "32", 14)]
    for d in range(3):
        for s in range(2): p.append(dsr(J_WK+8*d+4*s, 4, 14+s, 6144*d))
    for a in range(3):
        for s in range(6): p.append(dsr(J_WQ+24*a+4*s, 4, 5+(s & 1), TOFF[a]+384+64*(s >> 1)))
    return p

def main_kernel(o):
    a = khead(KNAME)
    a += f"    s_cmp_ge_u32 s2, {NWG}\n    s_cbranch_scc1 L_end\n"
    a += "    s_load_dwordx8 s[20:27], s[0:1], 8\n    s_load_dwordx2 s[42:43], s[0:1], 0\n    s_load_dwordx2 s[44:45], s[0:1], 40\n"
    if o.prof: a += "    s_load_dwordx2 s[46:47], s[0:1], 56\n    s_memtime s[50:51]\n    s_memrealtime s[98:99]\n"
    a += "    v_lshrrev_b32 v1, 6, v0\n    v_and_b32 v0, 63, v0\n    s_nop 0\n    v_readfirstlane_b32 s16, v1\n    s_nop 0\n"
    dst = [48, 54, 96, 114, 102, 108, 138, 120]
    a += f"""    s_sub_u32 s19, s16, 6
    s_cselect_b32 s19, s16, s19
    s_mov_b32 s60, 5462
    s_cmov_b32 s60, 1821
    s_mov_b32 s70, 18432
    s_cmov_b32 s70, 55296
    s_mul_i32 s61, s19, 144
    s_mul_i32 s62, s19, 9216
    s_mul_i32 s63, s16, 9216
    s_cmp_lt_u32 s16, 4
    s_mov_b32 s19, {RAW2 - 4*9216}
    s_cmov_b32 s19, {RAW0}
    s_add_u32 s63, s63, s19
    s_mov_b32 s71, 0x20000
    s_mov_b32 s17, 0
    s_mov_b32 s18, s2
    s_mov_b32 s34, 49152
"""
    a += emit(finalize(j_raw_addr()))
    L = 0; t0, t1, t2, t3, t4 = 10, 11, 12, 13, 14
    p = [sa(f"s_mul_i32 s37, s16, {2*RS}", rd=S(16), wr=S(37)), sa("s_mul_i32 s35, s16, 3072", rd=S(16), wr=S(35)),
         sa("s_lshl_b32 s41, s16, 1", rd=S(16), wr=S(41)+["scc"])] + t_nextwin()
    for u in range(3):
        v = T_DV+u
        p += [va("v_add_u32", t0, str(64*u), L), I(f"v_cmp_le_u32 vcc, 96, v{t0}", "valu", rd=V(t0), wr=["vcc"]),
              I(f"v_cndmask_b32 v{t1}, 0, 1, vcc", "valu", rd=["vcc"], wr=V(t1)),
              va("v_mul_u32_u24", t2, "96", t1), va("v_sub_u32", t0, t0, t2),
              va("v_mul_u32_u24", t2, "43", t0), va("v_lshrrev_b32", t2, "9", t2),
              va("v_mul_u32_u24", t3, "12", t2), va("v_sub_u32", t3, t0, t3),
              va("v_xor_b32", t4, t3, t1), va("v_xor_b32", t4, "s41", t4), va("v_and_b32", t4, "3", t4),
              va("v_and_b32", t3, "12", t3), va("v_or_b32", t3, t3, t4),
              va("v_mul_u32_u24", t2, "12", t2), va("v_add_u32", t3, t3, t2), va("v_lshlrev_b32", t3, "4", t3),
              va("v_mul_u32_u24", t1, str(RS), t1), va("v_add_u32", v, t3, t1)]
    dvp = emit(finalize(p))
    if o.dvearly: a += dvp
    a += """    s_cmp_lt_u32 s16, 6
    s_waitcnt lgkmcnt(0)
    s_cselect_b32 s68, s20, s22
    s_cselect_b32 s69, s21, s23
    s_and_b32 s69, s69, 0xffff
"""
    a += emit(finalize(j_raw_dma()))
    if not o.dvearly: a += dvp
    a += emit(srd(4, 42, XB))
    a += "    s_cmp_ge_u32 s16, 4\n    s_cbranch_scc1 L_noX\n"
    a += emit(finalize([i for g in t_dmas() for i in g] + [sa("s_add_u32 s35, s35, s34", rd=S(35)+S(34), wr=S(35)+["scc"])]))
    a += "L_noX:\n"
    a += emit(srd(8, 44, XB) + srd(28, 26, 18432) + srd(24, 24, 55296))
    if o.prof: a += emit(srd(12, 46, 73728)) + "    s_mov_b32 s48, 1\n    s_mov_b32 s49, s16\n"
    a += emit(finalize(j_consts()))
    a += f"""    s_lshl_b32 s19, s16, 1
    s_lshr_b32 s32, {0 | 1 << 2 | 2 << 4 | 2 << 6 | 0 << 8 | 1 << 10}, s19
    s_and_b32 s32, s32, 3
    s_mov_b32 s66, {dst[0] | dst[1] << 8 | dst[2] << 16 | dst[3] << 24}
    s_mov_b32 s67, {dst[4] | dst[5] << 8 | dst[6] << 16 | dst[7] << 24}
    s_lshl_b32 s19, s16, 3
    s_lshr_b64 s[66:67], s[66:67], s19
    s_and_b32 s67, s66, 0xff
    s_lshl_b32 s67, s67, 10
    s_mov_b32 s60, 0
    s_mov_b32 s61, 18432
    s_mov_b32 s62, 36864
    s_cmp_ge_u32 s16, 6
    s_cselect_b32 s66, 3, 1
"""
    ldM = j_loadM(); ldV = j_loadO(0) + j_loadV()
    sload = "    s_cmp_eq_u32 s16, 7\n    s_cbranch_scc0 L_ldV\n    s_mov_b32 s63, 0\n    s_mov_b32 s64, 18432\n    s_mov_b32 s65, 36864\n" + emit(ldM)
    sload += "    s_branch L_ld\nL_ldV:\n    s_mov_b32 s63, 0\n    s_mov_b32 s64, 6144\n    s_mov_b32 s65, 12288\n" + emit(j_loadO(1) + j_loadO(2)) + emit(ldV) + "L_ld:\n"
    sload += "    s_mov_b32 s19, 0x7000000\n" + "    buffer_load_dword v15, v0, s[4:7], s19 offen\n" * 12
    if o.searly: a += "    s_cbranch_scc0 L_nosl\n" + sload + "L_nosl:\n"
    a += emit(finalize(j_consts2() + j_lds_addr()))
    a += f"    v_lshl_add_u32 v10, v0, 2, v{J_F}\n    v_mov_b32 v11, 0\n    ds_write_b32 v10, v11\n"
    a += f"""    s_cmp_eq_u32 s32, 1
    s_cselect_b32 s63, {TOFF[1]}, 0
    s_cselect_b32 s64, 0, {TOFF[1]}
    s_cmp_eq_u32 s32, 2
    s_cselect_b32 s63, {TOFF[2]}, s63
    s_cselect_b32 s65, 0, {TOFF[2]}
"""
    a += emit(stamp(o))
    a += "    s_cmp_ge_u32 s16, 6\n    s_cbranch_scc1 L_jS\n    s_cmp_ge_u32 s16, 4\n    s_cbranch_scc1 L_w0\n    s_waitcnt vmcnt(12) lgkmcnt(0)\n    s_branch L_w1\nL_w0:\n    s_waitcnt vmcnt(0) lgkmcnt(0)\nL_w1:\n"
    a += f"    s_barrier\n    s_setprio {o.prioJ[0]}\n" + emit(stamp(o))
    rawdone = f"    s_waitcnt lgkmcnt(0)\n    s_mov_b64 exec, 1\n    ds_inc_u32 v{J_F}, v{J_F} offset:24\n    s_mov_b64 exec, -1\n"
    a += "    s_cmp_lt_u32 s16, 3\n    s_cbranch_scc0 L_rV\n" + emit(finalize(j_readM())) + rawdone + emit(stamp(o)) + "    s_branch L_jM\n"
    a += "L_rV:\n" + emit(finalize(j_readV())) + rawdone + emit(stamp(o)) + "    s_branch L_jV\n"
    a += f"L_jS:\n    s_waitcnt vmcnt({48 if o.searly else 0}) lgkmcnt(0)\n    s_barrier\n    s_setprio {o.prioJ[1]}\n" + emit(stamp(o))
    if not o.searly: a += sload
    a += poll1("L_Jw", 24, 6) + emit(stamp(o)) + "    s_cmp_eq_u32 s16, 7\n    s_cbranch_scc0 L_jV\nL_jM:\n"
    nop = "    s_nop 15\n"
    a += emit(fin_after(ldM, 12, j_Mpre())) + "L_jMl:\n"
    lp, t = schedule(j_Mloop(), verbose=True)
    a += nop + emit(finalize(lp)) + "    s_sub_u32 s66, s66, 1\n    s_cbranch_scc1 L_end\n    s_cmp_eq_u32 s66, 0\n    s_cbranch_scc1 L_jd\n" + emit(j_shift()) + "    s_branch L_jMl\n"
    a += "L_jV:\n" + emit(fin_after(ldV, 12, j_Vloop())) + "    s_cmp_eq_u32 s66, 1\n    s_cbranch_scc1 L_jd\n"
    a += "    s_sub_u32 s66, s66, 1\n" + emit(j_shift()) + "    s_branch L_jV\n"
    a += "L_jd:\n    s_cmp_ge_u32 s16, 6\n    s_cselect_b32 s19, 4, 0\n"
    a += f"    v_add_u32 v10, s19, v{J_F}\n    s_mov_b64 exec, 1\n    ds_inc_u32 v10, v10 offset:8\n    s_mov_b64 exec, -1\n"
    a += emit(stamp(o)) + "    s_cmp_ge_u32 s16, 4\n    s_cbranch_scc1 L_S\n"
    a += "    s_mov_b32 s97, 0\n"
    def i4(L, t0, t3, t4, dst):
        return [va("v_and_b32", t3, "1", L), va("v_lshlrev_b32", t3, "4", t3), va("v_mov_b32", t4, "0x3f80"), va("v_lshlrev_b32", t3, t3, t4),
          I(f"v_cmp_gt_u32 vcc, 2, v{t0}", "valu", rd=V(t0), wr=["vcc"]),
          I(f"v_cndmask_b32 v{dst}, 0, v{t3}, vcc", "valu", rd=V(t3)+["vcc"], wr=V(dst)),
          I(f"v_cndmask_b32 v{dst+1}, v{t3}, 0, vcc", "valu", rd=V(t3)+["vcc"], wr=V(dst+1))]
    p = []
    L = 0; t0, t1, t2, t3, t4 = 20, 21, 22, 23, 24
    p += [va("v_mov_b32", 26, J_F), va("v_lshlrev_b32", 25, "4", L), va("v_add_u32", T_AW, str(LW), 25)]
    p += [sa("s_mul_i32 s39, s16, 3072", rd=S(16), wr=S(39)),
          va("v_and_b32", t0, "3", L), va("v_bfe_u32", t1, L, "2", "3"), va("v_lshrrev_b32", t2, "5", L),
          va("v_xor_b32", t3, t0, t2), va("v_xor_b32", t3, "s41", t3), va("v_and_b32", t3, "3", t3), va("v_lshlrev_b32", t3, "4", t3),
          va("v_mul_u32_u24", t4, "12288", t0), va("v_add_u32", t3, t3, t4), va("v_mul_u32_u24", t4, "192", t1),
          va("v_add3_u32", T_AX, t3, t4, "s39"), va("v_xor_b32", T_AX+1, "32", T_AX), va("v_xor_b32", T_AX+2, "16", T_AX),
          va("v_xor_b32", T_AX+3, "48", T_AX),
          va("v_mul_u32_u24", t3, "72", t0), va("v_lshl_add_u32", t3, t2, "3", t3), va("v_add_u32", t3, t3, t1),
          sa("s_lshl_b32 s19, s16, 6", rd=S(16), wr=S(19)+["scc"]), sa(f"s_add_u32 s19, s19, {LR+1152}", rd=S(19), wr=S(19)+["scc"]),
          va("v_lshl_add_u32", T_AR, t3, "2", "s19")]
    p += i4(L, t0, t3, t4, T_I4) + [va("v_mov_b32", t4, "0x3f803f80")]
    m0 = sum(1 << (r+16*q) for r in range(8) for q in range(4) if (q & 1) == (r >> 2))
    for tau in range(2):
        m = m0 << (8*tau)
        p += [sa(f"s_mov_b32 s20, 0x{m & 0xffffffff:x}", wr=S(20)), sa(f"s_mov_b32 s21, 0x{m >> 32:x}", wr=S(21))]
        for k in range(4): p.append(cnd(T_SEL+4*tau+k, "0", t4, 20))
    for g in range(4):
        p += [sa(f"s_mov_b32 s{20+2*g}, 0x{0xF << (8*g):x}", wr=S(20+2*g)), sa(f"s_mov_b32 s{21+2*g}, 0x{0xF0 << (8*g):x}", wr=S(21+2*g))]
    for k in range(1, 4):
        m = 0x11111111 << k
        p += [sa(f"s_mov_b32 s{26+2*k}, 0x{m:x}", wr=S(26+2*k)), sa(f"s_mov_b32 s{27+2*k}, 0x{m:x}", wr=S(27+2*k))]
    a += emit(finalize(p))
    a += poll1("L_Tw", 8, 6, 27).replace(f"v{J_F} offset", "v26 offset") + emit(stamp(o))
    a += emit([dsr(T_MT+4*k, 4, 25, 49152+1024*k) for k in range(12)]) + "    s_waitcnt lgkmcnt(0)\n" + emit([sig(T_AW, FD)])
    a += f"    s_mov_b32 s36, 1\n    s_mov_b32 s40, -1152\n    s_setprio {o.prioT}\nL_Tloop:\n"
    a += emit(stamp(o)) + "    s_waitcnt vmcnt(0)\n" + emit(stamp(o))
    seq, t = schedule(t_body(o), dslat=o.dslatT, verbose=True, window=3000, fixed=True, vlat=o.vlat)
    ctl = [I(x, "salu") for x in ("s_sub_u32 s35, s35, s34", "s_sub_u32 s34, 0, s34", "s_sub_u32 s40, 0, s40", "s_add_u32 s36, s36, 1", "s_add_u32 s17, s17, 1",
                                 f"s_cmp_lt_u32 s17, {NWIN}", "s_cbranch_scc1 L_Tloop")]
    fin = finalize(seq); fin = finalize(seq, history=fin[-24:] + ctl)
    if o.show: show(fin, "T")
    a += emit(fine(o, dynprio(fin, o.dynT), 8))
    a += emit(stamp(o)) + emit(ctl)
    a += emit(finalize(t_rout(), history=fin[-24:] + ctl))
    a += emit(stamp(o)) + prof_out(o) + "    s_endpgm\n" + slow("L_Tc", T_FL, T_AW, FD, 36)
    a += "L_S:\n    s_setprio 0\n    s_mov_b32 s97, 8\n    v_mov_b32 v19, v0\n    s_waitcnt vmcnt(0)\n"
    L = 19; t0, t1, t2, t3, t4 = 20, 21, 22, 23, 24
    p = [sa("s_sub_u32 s16, s16, 4", rd=S(16), wr=S(16)+["scc"]), va("v_mov_b32", 26, J_F)]
    p += [sa("s_mul_i32 s35, s16, 12288", rd=S(16), wr=S(35)), sa(f"s_mul_i32 s39, s16, {FS}", rd=S(16), wr=S(39))]
    p += [va("v_lshlrev_b32", S_AW, "4", L), va("v_add_u32", S_AW, str(LW), S_AW),
          va("v_and_b32", t0, "7", L), va("v_bfe_u32", t1, L, "3", "2"), va("v_lshrrev_b32", t2, "5", L),
          va("v_mul_u32_u24", t3, "192", t0), va("v_and_b32", t4, "1", t1), va("v_mul_u32_u24", t4, str(RS), t4), va("v_add3_u32", S_VO, t3, t4, "s39"),
          va("v_lshl_add_u32", S_VO, t2, "4", S_VO), va("v_lshrrev_b32", t4, "1", t1), va("v_lshl_add_u32", S_VO, t4, "5", S_VO),
          sa("s_mul_i32 s19, s16, 288", rd=S(16), wr=S(19)), sa(f"s_add_u32 s19, s19, {LR}", rd=S(19), wr=S(19)+["scc"]),
          va("v_lshl_add_u32", S_RKA, t2, "4", "s19"), va("v_lshl_add_u32", S_RQA, L, "2", "s19"),
          va("v_xor_b32", t2, t2, t1), va("v_xor_b32", t2, "s16", t2), va("v_and_b32", t2, "3", t2), va("v_lshl_add_u32", t3, t2, "4", t3),
          va("v_mul_u32_u24", t4, "1536", t1),
          va("v_add3_u32", S_AE, t3, t4, "s35"), va("v_xor_b32", S_AE+1, "32", S_AE),
          va("v_and_b32", t0, "3", L)] + i4(L, t0, t3, t4, S_I4) + [
          sa("s_mov_b32 s43, 2", wr=S(43)), sa("s_mov_b32 s22, 3", wr=S(22)), sa("s_mov_b32 s24, 0x7000000", wr=S(24)), sa("s_mov_b32 s25, 0x7000000", wr=S(25)),
          sa("s_mov_b32 s40, 1152", wr=S(40))]
    a += emit(finalize(p))
    a += poll1("L_Sw", 12, 2, 27).replace(f"v{J_F} offset", "v26 offset") + emit(stamp(o))
    a += emit(s_pref()) + "L_Sloop:\n"
    p = win_off(20, 18, 19) + [sa(f"s_add_u32 s21, s20, {2*RS}"), sa(f"s_add_u32 s26, s20, {4*RS}"), sa(f"s_add_u32 s27, s20, {6*RS}"),
         sa(f"s_add_u32 s18, s18, {NWG}", rd=S(18), wr=S(18)+["scc"])]
    a += emit(stamp(o)) + emit(p) + "    s_setprio 0\n" + poll("L_Sp", S_TM, S_AW, FX, 43) + f"    s_setprio {o.prioS}\n" + emit(stamp(o))
    seq, t = schedule(s_body(o), dslat=o.dslat, verbose=True, window=3000, fixed=True, vlat=o.vlat)
    fin = finalize(seq)
    if o.show: show(fin, "S")
    a += emit(fine(o, dynprio(fin, o.dynS), 12))
    a += emit(stamp(o))
    ctl = [I(x, "salu") for x in ("s_sub_u32 s34, 0, s34", "s_sub_u32 s40, 0, s40", "s_add_u32 s43, s43, 2", "s_add_u32 s22, s22, 2", "s_mov_b64 s[24:25], s[20:21]",
           "s_add_u32 s17, s17, 1", f"s_cmp_lt_u32 s17, {NWIN}", "s_cbranch_scc1 L_Sloop")]
    a += emit(ctl)
    tail = []
    for rho in range(o.epre, 3): tail += s_pv(0, rho, ETILE[rho], 32, 24)
    if tail:
        seq, t = schedule(tail, fixed=True)
        a += emit(finalize(seq, history=fin[-24:] + ctl))
    a += emit(stamp(o)) + prof_out(o)
    a += "L_end:\n    s_endpgm\n" + slow("L_Sc", S_TM, S_AW, FX, 22)
    return a

def build(o):
    STF[0] = o.stf
    h = f"; @launch grid=({NWG},1,1) block=(512,1,1) lds={LDSZ}\n"
    if o.prof == 1: h += "; PROF5\n"
    h += '.amdgcn_target "amdgcn-amd-amdhsa--gfx950"\n'
    return h + main_kernel(o) + kd(KNAME)

if __name__ == "__main__":
    out = sys.argv[1]
    kw = {}
    for x in sys.argv[2:]:
        k, v = x.split("="); kw[k] = eval(v)
    open(out, "w").write(build(Opt(**kw)))
```
